```python
import torch

def _softmax(x, axis=-1):
    return torch.softmax(x, dim=axis)
def _gelu(x):
    return torch.nn.functional.gelu(x, approximate="tanh")
def _silu(x):
    return torch.nn.functional.silu(x)
def _sigmoid(x):
    return torch.sigmoid(x)
def _layernorm(x, axis=-1, eps=1e-5):
    m = x.mean(dim=axis, keepdim=True)
    v = x.var(dim=axis, keepdim=True, unbiased=False)
    return (x - m) / torch.sqrt(v + eps)
def _scatter_add(tgt, idx, src, axis=0):
    return tgt.clone().index_add_(axis, idx, src)
def _segment_sum(src, seg, n):
    out = torch.zeros((n,) + src.shape[1:], dtype=src.dtype)
    return out.index_add_(0, seg, src)
def _pad(x, pw):
    flat = tuple(v for pair in reversed(pw) for v in pair)
    return torch.nn.functional.pad(x, flat)

kernel_name = 'concat_heads__gqa_block_cached__gqa_block_cached__near_ridge'

def setup_inputs():

    _w = (lambda a: (lambda t: t.to(torch.bfloat16) if t.is_floating_point() else t)(torch.as_tensor(a)))
    def _A_setup():
        B, Sq, D = 8, 192, 640
        Hq, Hkv, Sk, Dh = 32, 32, 512, 192
        assert Hq % Hkv == 0, (Hq, Hkv)
        return {
            "x": _w((lambda *s: torch.randn(*s, dtype=torch.bfloat16) * 0.8)(B, Sq, D)),
            "k_cache": _w((lambda *s: torch.randn(*s, dtype=torch.bfloat16) * 0.8)(B, Hkv, Sk, Dh)),
            "v_cache": _w((lambda *s: torch.randn(*s, dtype=torch.bfloat16) * 0.05)(B, Hkv, Sk, Dh)),
            "wq": _w((lambda *s: torch.randn(*s, dtype=torch.bfloat16) * 0.8)(D, Hq * Dh) * (D ** -0.5)),
            "wo": _w((lambda *s: torch.randn(*s, dtype=torch.bfloat16) * 0.05)(Hq * Dh, D) * ((Hq * Dh) ** -0.5)),
        }
    _A_in = _A_setup()

    def _B_setup():
        B, Sq, D = 8, 192, 640
        Hq, Hkv, Sk, Dh = 32, 32, 512, 192
        assert Hq % Hkv == 0, (Hq, Hkv)
        return {
            "x": _w((lambda *s: torch.randn(*s, dtype=torch.bfloat16) * 0.8)(B, Sq, D)),
            "k_cache": _w((lambda *s: torch.randn(*s, dtype=torch.bfloat16) * 0.8)(B, Hkv, Sk, Dh)),
            "v_cache": _w((lambda *s: torch.randn(*s, dtype=torch.bfloat16) * 0.05)(B, Hkv, Sk, Dh)),
            "wq": _w((lambda *s: torch.randn(*s, dtype=torch.bfloat16) * 0.8)(D, Hq * Dh) * (D ** -0.5)),
            "wo": _w((lambda *s: torch.randn(*s, dtype=torch.bfloat16) * 0.05)(Hq * Dh, D) * ((Hq * Dh) ** -0.5)),
        }
    _B_in = _B_setup()

    return {
        "A_x": _A_in["x"],
        "A_k_cache": _A_in["k_cache"],
        "A_v_cache": _A_in["v_cache"],
        "A_wq": _A_in["wq"],
        "A_wo": _A_in["wo"],
        "B_x": _B_in["x"],
        "B_k_cache": _B_in["k_cache"],
        "B_v_cache": _B_in["v_cache"],
        "B_wq": _B_in["wq"],
        "B_wo": _B_in["wo"],
    }

def reference(A_x, A_k_cache, A_v_cache, A_wq, A_wo, B_x, B_k_cache, B_v_cache, B_wq, B_wo):
    def _A_ref(x, k_cache, v_cache, wq, wo):
        B, Sq, D = x.shape
        Hq, Dh = 32, 192
        Hkv = k_cache.shape[1]
        rep = Hq // Hkv
        q = (lambda x, *d: x.permute(*d))((x @ wq).reshape(B, Sq, Hq, Dh), 0, 2, 1, 3)
        k = (lambda x, n, axis: torch.repeat_interleave(x, n, dim=axis))(k_cache, rep, axis=1)
        v = (lambda x, n, axis: torch.repeat_interleave(x, n, dim=axis))(v_cache, rep, axis=1)
        scores = torch.einsum("bhqd,bhkd->bhqk", q, k) * (Dh ** -0.5)
        p = _softmax(scores, axis=-1)
        o = torch.einsum("bhqk,bhkd->bhqd", p, v)
        return (lambda x, *d: x.permute(*d))(o, 0, 2, 1, 3).reshape(B, Sq, Hq * Dh) @ wo

    def _B_ref(x, k_cache, v_cache, wq, wo):
        B, Sq, D = x.shape
        Hq, Dh = 32, 192
        Hkv = k_cache.shape[1]
        rep = Hq // Hkv
        q = (lambda x, *d: x.permute(*d))((x @ wq).reshape(B, Sq, Hq, Dh), 0, 2, 1, 3)
        k = (lambda x, n, axis: torch.repeat_interleave(x, n, dim=axis))(k_cache, rep, axis=1)
        v = (lambda x, n, axis: torch.repeat_interleave(x, n, dim=axis))(v_cache, rep, axis=1)
        scores = torch.einsum("bhqd,bhkd->bhqk", q, k) * (Dh ** -0.5)
        p = _softmax(scores, axis=-1)
        o = torch.einsum("bhqk,bhkd->bhqd", p, v)
        return (lambda x, *d: x.permute(*d))(o, 0, 2, 1, 3).reshape(B, Sq, Hq * Dh) @ wo

    a = _A_ref(A_x, A_k_cache, A_v_cache, A_wq, A_wo)
    b = _B_ref(B_x, B_k_cache, B_v_cache, B_wq, B_wo)
    return torch.concatenate([a, b], axis=-1)
```

```python
import math
import sys

NAME = "concat_heads__gqa_block_cached__gqa_block_cached__near_ridge"

HEADER = """; Kernarg layout for this problem (104 bytes, ptrs only, base s[0:1]):
"""

WS_P_OFF = 41943040


class Emitter:
    def __init__(self):
        self.lines = []
        self.lab = 0

    def __call__(self, s):
        self.lines.append("    " + s)

    def label(self, name):
        self.lines.append(name + ":")

    def raw(self, s):
        self.lines.append(s)

    def newlabel(self, base):
        self.lab += 1
        return f"L_{base}_{self.lab}"

    def text(self):
        return "\n".join(self.lines) + "\n"


def vr(a, n=1):
    return f"v{a}" if n == 1 else f"v[{a}:{a+n-1}]"


def sr(a, n=1):
    return f"s{a}" if n == 1 else f"s[{a}:{a+n-1}]"


def emit_pipeline(e, items, bufs, lookahead):
    mf = [i for i, it in enumerate(items) if it[0] == 'mfma']
    nb = len(bufs)
    assert lookahead < nb
    issued = 0
    last_idx = {}
    nxt = 0

    def issue(o):
        nonlocal issued
        it = items[mf[o]]
        b = bufs[o % nb]
        for (roff, rn, fmt) in it[1]:
            e(fmt.format(dst=vr(b + roff, rn)))
            issued += 1
        last_idx[o] = issued

    while nxt < min(lookahead, len(mf)):
        issue(nxt)
        nxt += 1
    o = 0
    for it in items:
        if it[0] == 'code':
            it[1]()
            continue
        if nxt < len(mf):
            issue(nxt)
            nxt += 1
        n = issued - last_idx[o]
        assert n <= 15
        e(f"s_waitcnt lgkmcnt({n})")
        it[2](bufs[o % nb])
        o += 1


def emit_f(e, dst, row, tmp):
    e(f"v_lshrrev_b32 {vr(tmp)}, 1, {vr(row)}")
    e(f"v_and_b32 {vr(dst)}, 1, {vr(tmp)}")
    e(f"v_lshlrev_b32 {vr(dst)}, 2, {vr(dst)}")
    e(f"v_and_b32 {vr(tmp+1)}, 2, {vr(tmp)}")
    e(f"v_or_b32 {vr(dst)}, {vr(dst)}, {vr(tmp+1)}")
    e(f"v_bfe_u32 {vr(tmp+1)}, {vr(tmp)}, 2, 1")
    e(f"v_or_b32 {vr(dst)}, {vr(dst)}, {vr(tmp+1)}")


def gen_k1(e):
    ACC = 0
    QF = 96
    S = 144
    P = 176
    BUFS = [192 + 4 * i for i in range(6)]
    KB = 216
    VB = 220
    KC = 224
    VC = 228
    VOKV, VOW, VOX = 232, 233, 234
    M, L = 235, 236
    T = 237
    XB = 244
    WB = 248
    VOUT = 252

    sX, sW, sK, sV, sO = 40, 44, 48, 52, 56
    s_stage, s_cur, s_prev, s_xoff, s_woff, s_kvoff, s_wlds, s_t0, s_t1, s_c, s_thr = 60, 61, 62, 63, 64, 65, 66, 67, 68, 69, 70
    s_b, s_h, s_blk, s_w = 71, 72, 73, 74

    e.raw(".globl k1_kernel")
    e.raw(".p2align 8")
    e.raw(".type k1_kernel,@function")
    e.label("k1_kernel")
    e("s_cmp_ge_u32 s2, 512")
    e("s_cbranch_scc1 L_k1_end")
    e("s_load_dwordx16 s[16:31], s[0:1], 0")
    e("s_load_dwordx4 s[32:35], s[0:1], 64")
    e("s_load_dwordx2 s[36:37], s[0:1], 96")
    e("s_and_b32 s3, s2, 7")
    e("s_lshr_b32 s4, s2, 3")
    e(f"s_and_b32 {sr(s_b)}, s4, 7")
    e("s_lshr_b32 s4, s4, 3")
    e("s_lshl_b32 s3, s3, 3")
    e("s_add_u32 s3, s3, s4")
    e(f"s_lshr_b32 {sr(s_blk)}, s3, 5")
    e(f"s_and_b32 {sr(s_h)}, s3, 31")
    e(f"v_lshrrev_b32 {vr(T)}, 6, v0")
    e("s_nop 0")
    e(f"v_readfirstlane_b32 {sr(s_w)}, {vr(T)}")
    e("s_waitcnt lgkmcnt(0)")
    e(f"s_cmp_eq_u32 {sr(s_blk)}, 0")
    e("s_cselect_b32 s4, s16, s26")
    e("s_cselect_b32 s5, s17, s27")
    e("s_cselect_b32 s6, s18, s28")
    e("s_cselect_b32 s7, s19, s29")
    e("s_cselect_b32 s8, s20, s30")
    e("s_cselect_b32 s9, s21, s31")
    e("s_cselect_b32 s10, s22, s32")
    e("s_cselect_b32 s11, s23, s33")
    e(f"s_mul_i32 s3, {sr(s_b)}, 245760")
    e(f"s_add_u32 {sr(sX)}, s4, s3")
    e(f"s_addc_u32 {sr(sX+1)}, s5, 0")
    e(f"s_mov_b32 {sr(sX+2)}, 245760")
    e(f"s_mov_b32 {sr(sX+3)}, 0x00020000")
    e(f"s_mul_i32 s3, {sr(s_h)}, 384")
    e(f"s_add_u32 {sr(sW)}, s10, s3")
    e(f"s_addc_u32 {sr(sW+1)}, s11, 0")
    e(f"s_sub_u32 {sr(sW+2)}, 7864320, s3")
    e(f"s_mov_b32 {sr(sW+3)}, 0x00020000")
    e(f"s_lshl_b32 s3, {sr(s_b)}, 5")
    e(f"s_add_u32 s3, s3, {sr(s_h)}")
    e("s_mul_i32 s3, s3, 196608")
    e(f"s_add_u32 {sr(sK)}, s6, s3")
    e(f"s_addc_u32 {sr(sK+1)}, s7, 0")
    e(f"s_mov_b32 {sr(sK+2)}, 196608")
    e(f"s_mov_b32 {sr(sK+3)}, 0x00020000")
    e(f"s_add_u32 {sr(sV)}, s8, s3")
    e(f"s_addc_u32 {sr(sV+1)}, s9, 0")
    e(f"s_mov_b32 {sr(sV+2)}, 196608")
    e(f"s_mov_b32 {sr(sV+3)}, 0x00020000")
    e(f"s_lshl_b32 s3, {sr(s_blk)}, 3")
    e(f"s_add_u32 s3, s3, {sr(s_b)}")
    e("s_mul_i32 s3, s3, 2359296")
    e(f"s_add_u32 {sr(sO)}, s36, s3")
    e(f"s_addc_u32 {sr(sO+1)}, s37, 0")
    e(f"s_mov_b32 {sr(sO+2)}, 2359296")
    e(f"s_mov_b32 {sr(sO+3)}, 0x00020000")
    e(f"s_lshl_b32 {sr(s_wlds)}, {sr(s_w)}, 10")

    t0, t1, t2, t3, t4 = T, T + 1, T + 2, T + 3, T + 4
    e("s_movk_i32 s3, 2731")
    e(f"v_mul_lo_u32 {vr(t0)}, v0, s3")
    e(f"v_lshrrev_b32 {vr(t0)}, 16, {vr(t0)}")
    e(f"v_mul_u32_u24 {vr(t1)}, 24, {vr(t0)}")
    e(f"v_sub_u32 {vr(t1)}, v0, {vr(t1)}")
    emit_f(e, t2, t0, t3)
    e(f"v_xor_b32 {vr(t1)}, {vr(t1)}, {vr(t2)}")
    e(f"v_lshlrev_b32 {vr(t1)}, 4, {vr(t1)}")
    e(f"v_mul_u32_u24 {vr(t3)}, 384, {vr(t0)}")
    e(f"v_add_u32 {vr(VOKV)}, {vr(t3)}, {vr(t1)}")
    e(f"v_mul_u32_u24 {vr(t3)}, 12288, {vr(t0)}")
    e(f"v_add_u32 {vr(VOW)}, {vr(t3)}, {vr(t1)}")
    e(f"v_lshrrev_b32 {vr(t0)}, 3, v0")
    e(f"v_and_b32 {vr(t1)}, 7, v0")
    emit_f(e, t2, t0, t3)
    e(f"v_xor_b32 {vr(t1)}, {vr(t1)}, {vr(t2)}")
    e(f"v_lshlrev_b32 {vr(t1)}, 4, {vr(t1)}")
    e(f"v_mul_u32_u24 {vr(t3)}, 1280, {vr(t0)}")
    e(f"v_add_u32 {vr(VOX)}, {vr(t3)}, {vr(t1)}")

    LANE, HH, L31, GP, R, C = 1, 2, 3, 4, 5, 6
    e(f"v_and_b32 {vr(LANE)}, 63, v0")
    e(f"v_lshrrev_b32 {vr(HH)}, 5, {vr(LANE)}")
    e(f"v_and_b32 {vr(L31)}, 31, {vr(LANE)}")
    e(f"v_bfe_u32 {vr(GP)}, {vr(LANE)}, 4, 1")
    e(f"v_bfe_u32 {vr(R)}, {vr(LANE)}, 2, 2")
    e(f"v_and_b32 {vr(C)}, 3, {vr(LANE)}")
    e(f"v_lshlrev_b32 {vr(VOUT)}, 4, {vr(LANE)}")
    e(f"s_mul_i32 s3, {sr(s_w)}, 393216")
    e(f"s_mul_i32 s4, {sr(s_h)}, 12288")
    e("s_add_u32 s3, s3, s4")
    e(f"v_add_u32 {vr(VOUT)}, s3, {vr(VOUT)}")
    emit_f(e, t2, L31, t3)
    for tp in range(4):
        e(f"v_add_u32 {vr(t0)}, {2*tp}, {vr(HH)}")
        e(f"v_xor_b32 {vr(t0)}, {vr(t0)}, {vr(t2)}")
        e(f"v_lshlrev_b32 {vr(t0)}, 4, {vr(t0)}")
        e(f"v_mul_u32_u24 {vr(t1)}, 384, {vr(L31)}")
        e(f"v_add_u32 {vr(KB+tp)}, {vr(t0)}, {vr(t1)}")
    e(f"s_lshl_b32 s3, {sr(s_w)}, 12")
    for tp in range(4):
        e(f"v_add_u32 {vr(t0)}, {2*tp}, {vr(HH)}")
        e(f"v_xor_b32 {vr(t0)}, {vr(t0)}, {vr(t2)}")
        e(f"v_lshlrev_b32 {vr(t0)}, 4, {vr(t0)}")
        e(f"v_lshlrev_b32 {vr(t1)}, 7, {vr(L31)}")
        e(f"v_add3_u32 {vr(XB+tp)}, {vr(t0)}, {vr(t1)}, s3")
    for kind in ("v", "w"):
        for ee in range(2):
            if kind == "v":
                e(f"v_lshlrev_b32 {vr(t0)}, 2, {vr(HH)}")
                e(f"v_add3_u32 {vr(t0)}, {vr(t0)}, {vr(R)}, {8*ee}")
            else:
                e(f"v_lshlrev_b32 {vr(t0)}, 3, {vr(HH)}")
                e(f"v_add3_u32 {vr(t0)}, {vr(t0)}, {vr(R)}, {4*ee}")
            emit_f(e, t2, t0, t3)
            for dtp in range(2):
                e(f"v_lshlrev_b32 {vr(t1)}, 1, {vr(GP)}")
                if kind == "v":
                    e(f"v_lshrrev_b32 {vr(t3)}, 1, {vr(C)}")
                else:
                    e(f"v_and_b32 {vr(t3)}, 1, {vr(C)}")
                e(f"v_add3_u32 {vr(t1)}, {vr(t1)}, {vr(t3)}, {4*dtp}")
                e(f"v_xor_b32 {vr(t1)}, {vr(t1)}, {vr(t2)}")
                e(f"v_lshlrev_b32 {vr(t1)}, 4, {vr(t1)}")
                if kind == "v":
                    e(f"v_and_b32 {vr(t3)}, 1, {vr(C)}")
                else:
                    e(f"v_lshrrev_b32 {vr(t3)}, 1, {vr(C)}")
                e(f"v_lshlrev_b32 {vr(t3)}, 3, {vr(t3)}")
                e(f"v_mul_u32_u24 {vr(t4)}, 384, {vr(t0)}")
                e(f"v_add3_u32 {vr(t1)}, {vr(t1)}, {vr(t3)}, {vr(t4)}")
                base = (VB if kind == "v" else WB) + ee * 2 + dtp
                e(f"v_add_u32 {vr(base)}, 24576, {vr(t1)}")

    def issue_xw(dst_s):
        for i in range(4):
            e(f"s_add_u32 {sr(s_t0)}, {sr(dst_s)}, {sr(s_wlds)}")
            if i:
                e(f"s_add_u32 {sr(s_t0)}, {sr(s_t0)}, {6144*i}")
            e(f"s_mov_b32 m0, {sr(s_t0)}")
            e(f"s_add_u32 {sr(s_t1)}, {sr(s_xoff)}, {i*48*1280}")
            e(f"buffer_load_dwordx4 {vr(VOX)}, {sr(sX,4)}, {sr(s_t1)} offen lds")
        for i in range(4):
            e(f"s_add_u32 {sr(s_t0)}, {sr(dst_s)}, {sr(s_wlds)}")
            e(f"s_add_u32 {sr(s_t0)}, {sr(s_t0)}, {24576+6144*i}")
            e(f"s_mov_b32 m0, {sr(s_t0)}")
            e(f"s_add_u32 {sr(s_t1)}, {sr(s_woff)}, {i*16*12288}")
            e(f"buffer_load_dwordx4 {vr(VOW)}, {sr(sW,4)}, {sr(s_t1)} offen lds")
        e(f"s_add_u32 {sr(s_xoff)}, {sr(s_xoff)}, 128")
        e(f"s_add_u32 {sr(s_woff)}, {sr(s_woff)}, {64*12288}")

    def issue_kv(dst_s):
        for (srd, add) in ((sK, 0), (sV, 24576)):
            for i in range(4):
                e(f"s_add_u32 {sr(s_t0)}, {sr(dst_s)}, {sr(s_wlds)}")
                if add + 6144 * i:
                    e(f"s_add_u32 {sr(s_t0)}, {sr(s_t0)}, {add+6144*i}")
                e(f"s_mov_b32 m0, {sr(s_t0)}")
                e(f"s_add_u32 {sr(s_t1)}, {sr(s_kvoff)}, {i*6144}")
                e(f"buffer_load_dwordx4 {vr(VOKV)}, {sr(srd,4)}, {sr(s_t1)} offen lds")
        e(f"s_add_u32 {sr(s_kvoff)}, {sr(s_kvoff)}, 24576")

    def advance_slots():
        e(f"s_mov_b32 {sr(s_prev)}, {sr(s_cur)}")
        e(f"s_add_u32 {sr(s_cur)}, {sr(s_cur)}, 49152")
        e(f"s_cmp_eq_u32 {sr(s_cur)}, 147456")
        e(f"s_cselect_b32 {sr(s_cur)}, 0, {sr(s_cur)}")

    e(f"s_mov_b32 {sr(s_xoff)}, 0")
    e(f"s_mov_b32 {sr(s_woff)}, 0")
    e(f"s_mov_b32 {sr(s_kvoff)}, 0")
    e(f"s_mov_b32 {sr(s_cur)}, 0")
    issue_xw(s_cur)
    e(f"s_mov_b32 {sr(s_cur)}, 49152")
    issue_xw(s_cur)
    e(f"s_mov_b32 {sr(s_cur)}, 0")
    e(f"s_mov_b32 {sr(s_prev)}, 98304")
    e(f"s_mov_b32 {sr(s_stage)}, 0")
    c2 = (192 ** -0.5) * math.log2(math.e)
    import struct
    c2bits = struct.unpack("<I", struct.pack("<f", c2))[0]
    e(f"s_mov_b32 {sr(s_c)}, 0x{c2bits:08x}")
    thr_raw = 8.0 / c2
    thrbits = struct.unpack("<I", struct.pack("<f", thr_raw))[0]
    e(f"s_mov_b32 {sr(s_thr)}, 0x{thrbits:08x}")
    for i in range(96):
        e(f"v_mov_b32 {vr(ACC+i)}, 0")

    e.label("L_k1_qloop")
    e("s_waitcnt vmcnt(8)")
    e("s_barrier")
    e(f"s_cmp_lt_u32 {sr(s_stage)}, 8")
    e("s_cbranch_scc0 L_k1_q_kv")
    issue_xw(s_prev)
    e("s_branch L_k1_q_issued")
    e.label("L_k1_q_kv")
    issue_kv(s_prev)
    e.label("L_k1_q_issued")
    for i in range(4):
        e(f"v_add_u32 {vr(KC+i)}, {sr(s_cur)}, {vr(XB+i)}")
        e(f"v_add_u32 {vr(VC+i)}, {sr(s_cur)}, {vr(WB+i)}")
    for t in range(4):
        e(f"ds_read_b128 {vr(S+4*t,4)}, {vr(KC+t)}")
    items = []
    first = [True]
    for t in range(4):
        for dt in range(6):
            a, dtp = dt >> 1, dt & 1
            imm = 6144 * t + 128 * a
            reads = [(0, 2, "ds_read_b64_tr_b16 {dst}, " + f"{vr(VC+0*2+dtp)} offset:{imm}"),
                     (2, 2, "ds_read_b64_tr_b16 {dst}, " + f"{vr(VC+1*2+dtp)} offset:{imm}")]

            def mf(b, t=t, dt=dt):
                e(f"v_mfma_f32_32x32x16_bf16 {vr(ACC+16*dt,16)}, {vr(b,4)}, {vr(S+4*t,4)}, {vr(ACC+16*dt,16)}")
            items.append(('mfma', reads, mf))
    emit_pipeline(e, items, BUFS, 4)
    advance_slots()
    e(f"s_add_u32 {sr(s_stage)}, {sr(s_stage)}, 1")
    e(f"s_cmp_lt_u32 {sr(s_stage)}, 10")
    e("s_cbranch_scc1 L_k1_qloop")

    e("s_nop 15")
    for t in range(12):
        dt, tp = t >> 1, t & 1
        for i in range(4):
            a = ACC + 16 * dt + 8 * tp + 2 * i
            e(f"v_cvt_pk_bf16_f32 {vr(QF+4*t+i)}, {vr(a)}, {vr(a+1)}")
    for i in range(96):
        e(f"v_mov_b32 {vr(ACC+i)}, 0")
    e(f"v_mov_b32 {vr(M)}, 0xff800000")
    e(f"v_mov_b32 {vr(L)}, 0")
    e(f"s_mov_b32 {sr(s_stage)}, 0")

    e.label("L_k1_aloop")
    e(f"s_cmp_eq_u32 {sr(s_stage)}, 7")
    e("s_cbranch_scc1 L_k1_a_w0")
    e("s_waitcnt vmcnt(8)")
    e("s_branch L_k1_a_w1")
    e.label("L_k1_a_w0")
    e("s_waitcnt vmcnt(0)")
    e.label("L_k1_a_w1")
    e("s_barrier")
    e(f"s_cmp_lt_u32 {sr(s_stage)}, 6")
    e("s_cbranch_scc0 L_k1_a_noissue")
    issue_kv(s_prev)
    e.label("L_k1_a_noissue")
    for i in range(4):
        e(f"v_add_u32 {vr(KC+i)}, {sr(s_cur)}, {vr(KB+i)}")
        e(f"v_add_u32 {vr(VC+i)}, {sr(s_cur)}, {vr(VB+i)}")
    items = []
    for tile in range(2):
        for t in range(12):
            imm = 128 * (t >> 2) + 12288 * tile
            reads = [(0, 4, "ds_read_b128 {dst}, " + f"{vr(KC+(t&3))} offset:{imm}")]

            def mf(b, t=t, tile=tile):
                c = "0" if t == 0 else vr(S + 16 * tile, 16)
                e(f"v_mfma_f32_32x32x16_bf16 {vr(S+16*tile,16)}, {vr(b,4)}, {vr(QF+4*t,4)}, {c}")
            items.append(('mfma', reads, mf))

    def softmax():
        mx, a2, b2 = T, T + 1, T + 2
        e(f"v_max3_f32 {vr(mx)}, {vr(S)}, {vr(S+1)}, {vr(S+2)}")
        for i in range(3, 15, 2):
            e(f"v_max3_f32 {vr(mx)}, {vr(mx)}, {vr(S+i)}, {vr(S+i+1)}")
        e(f"v_max_f32 {vr(mx)}, {vr(mx)}, {vr(S+15)}")
        e("s_nop 5")
        for i in range(16, 32, 2):
            e(f"v_max3_f32 {vr(mx)}, {vr(mx)}, {vr(S+i)}, {vr(S+i+1)}")
        e(f"v_mov_b32 {vr(a2)}, {vr(mx)}")
        e("s_nop 1")
        e(f"v_permlane32_swap_b32 {vr(mx)}, {vr(a2)}")
        e(f"v_max_f32 {vr(mx)}, {vr(mx)}, {vr(a2)}")
        e(f"v_max_f32 {vr(mx)}, {vr(mx)}, {vr(M)}")
        e(f"v_sub_f32 {vr(a2)}, {vr(mx)}, {vr(M)}")
        e(f"v_cmp_lt_f32 vcc, {sr(s_thr)}, {vr(a2)}")
        e("s_cbranch_vccz L_k1_norescale")
        e(f"v_sub_f32 {vr(a2)}, {vr(M)}, {vr(mx)}")
        e(f"v_mul_f32 {vr(a2)}, {sr(s_c)}, {vr(a2)}")
        e(f"v_exp_f32 {vr(a2)}, {vr(a2)}")
        e(f"v_mov_b32 {vr(M)}, {vr(mx)}")
        e(f"v_mul_f32 {vr(L)}, {vr(L)}, {vr(a2)}")
        for i in range(96):
            e(f"v_mul_f32 {vr(ACC+i)}, {vr(ACC+i)}, {vr(a2)}")
        e.label("L_k1_norescale")
        e(f"v_mul_f32 {vr(b2)}, {sr(s_c)}, {vr(M)}")
        for i in range(32):
            e(f"v_fma_f32 {vr(S+i)}, {vr(S+i)}, {sr(s_c)}, -{vr(b2)}")
        for i in range(32):
            e(f"v_exp_f32 {vr(S+i)}, {vr(S+i)}")
        e(f"v_add_f32 {vr(a2)}, {vr(S)}, {vr(S+1)}")
        e(f"v_add_f32 {vr(mx)}, {vr(S+2)}, {vr(S+3)}")
        for i in range(4, 32, 2):
            e(f"v_add_f32 {vr(a2)}, {vr(a2)}, {vr(S+i)}")
            e(f"v_add_f32 {vr(mx)}, {vr(mx)}, {vr(S+i+1)}")
        for i in range(16):
            e(f"v_cvt_pk_bf16_f32 {vr(P+i)}, {vr(S+2*i)}, {vr(S+2*i+1)}")
        e(f"v_add_f32 {vr(a2)}, {vr(a2)}, {vr(mx)}")
        e(f"v_add_f32 {vr(L)}, {vr(L)}, {vr(a2)}")
    items.append(('code', softmax))
    for t in range(4):
        for dt in range(6):
            a, dtp = dt >> 1, dt & 1
            imm = 6144 * t + 128 * a
            reads = [(0, 2, "ds_read_b64_tr_b16 {dst}, " + f"{vr(VC+0*2+dtp)} offset:{imm}"),
                     (2, 2, "ds_read_b64_tr_b16 {dst}, " + f"{vr(VC+1*2+dtp)} offset:{imm}")]

            def mf(b, t=t, dt=dt):
                e(f"v_mfma_f32_32x32x16_bf16 {vr(ACC+16*dt,16)}, {vr(b,4)}, {vr(P+4*t,4)}, {vr(ACC+16*dt,16)}")
            items.append(('mfma', reads, mf))
    emit_pipeline(e, items, BUFS, 4)
    advance_slots()
    e(f"s_add_u32 {sr(s_stage)}, {sr(s_stage)}, 1")
    e(f"s_cmp_lt_u32 {sr(s_stage)}, 8")
    e("s_cbranch_scc1 L_k1_aloop")

    a2 = T + 1
    e(f"v_mov_b32 {vr(a2)}, {vr(L)}")
    e("s_nop 1")
    e(f"v_permlane32_swap_b32 {vr(L)}, {vr(a2)}")
    e(f"v_add_f32 {vr(L)}, {vr(L)}, {vr(a2)}")
    e(f"v_rcp_f32 {vr(L)}, {vr(L)}")
    e("s_nop 7")
    for i in range(96):
        e(f"v_mul_f32 {vr(ACC+i)}, {vr(ACC+i)}, {vr(L)}")
    for t in range(12):
        dt, tp = t >> 1, t & 1
        for i in range(4):
            a = ACC + 16 * dt + 8 * tp + 2 * i
            e(f"v_cvt_pk_bf16_f32 {vr(QF+4*t+i)}, {vr(a)}, {vr(a+1)}")
    for t in range(12):
        e(f"s_movk_i32 s3, {1024*t}")
        e(f"buffer_store_dwordx4 {vr(QF+4*t,4)}, {vr(VOUT)}, {sr(sO,4)}, s3 offen")
    e("s_waitcnt vmcnt(0)")
    e.label("L_k1_end")
    e("s_endpgm")


def gen_k2(e):
    ACC = 0
    AS = 80
    BUFS = [152 + 4 * i for i in range(6)]
    VO = 176
    BBASE = 181
    BCUR = 182
    VOA = 183
    VOP = 184
    T = 185
    sWO, sA, sP = 40, 44, 48
    s_blk, s_ks, s_b, s_nc, s_w, s_wl, s_t0, s_t1 = 60, 61, 62, 63, 64, 65, 66, 67

    e.raw(".globl k2_kernel")
    e.raw(".p2align 8")
    e.raw(".type k2_kernel,@function")
    e.label("k2_kernel")
    e("s_cmp_ge_u32 s2, 256")
    e("s_cbranch_scc1 L_k2_end")
    e("s_load_dwordx2 s[16:17], s[0:1], 32")
    e("s_load_dwordx2 s[18:19], s[0:1], 72")
    e("s_load_dwordx2 s[36:37], s[0:1], 96")
    e("s_and_b32 s3, s2, 7")
    e(f"s_lshr_b32 {sr(s_blk)}, s3, 2")
    e(f"s_and_b32 {sr(s_ks)}, s3, 3")
    e("s_lshr_b32 s4, s2, 3")
    e(f"s_lshr_b32 {sr(s_b)}, s4, 2")
    e(f"s_and_b32 {sr(s_nc)}, s4, 3")
    e(f"v_lshrrev_b32 {vr(T)}, 6, v0")
    e("s_nop 0")
    e(f"v_readfirstlane_b32 {sr(s_w)}, {vr(T)}")
    e("s_waitcnt lgkmcnt(0)")
    e(f"s_cmp_eq_u32 {sr(s_blk)}, 0")
    e("s_cselect_b32 s4, s16, s18")
    e("s_cselect_b32 s5, s17, s19")
    e(f"s_mul_i32 s3, {sr(s_ks)}, {1536*1280}")
    e(f"s_mul_i32 s6, {sr(s_nc)}, 320")
    e("s_add_u32 s3, s3, s6")
    e(f"s_add_u32 {sr(sWO)}, s4, s3")
    e(f"s_addc_u32 {sr(sWO+1)}, s5, 0")
    e(f"s_sub_u32 {sr(sWO+2)}, 7864320, s3")
    e(f"s_mov_b32 {sr(sWO+3)}, 0x00020000")
    e(f"s_lshl_b32 s3, {sr(s_blk)}, 3")
    e(f"s_add_u32 s3, s3, {sr(s_b)}")
    e("s_mul_i32 s3, s3, 2359296")
    e(f"s_add_u32 {sr(sA)}, s36, s3")
    e(f"s_addc_u32 {sr(sA+1)}, s37, 0")
    e(f"s_mov_b32 {sr(sA+2)}, 2359296")
    e(f"s_mov_b32 {sr(sA+3)}, 0x00020000")
    e(f"s_lshl_b32 s3, {sr(s_ks)}, 1")
    e(f"s_add_u32 s3, s3, {sr(s_blk)}")
    e("s_mul_i32 s3, s3, 3932160")
    e(f"s_mul_i32 s6, {sr(s_b)}, {192*2560}")
    e("s_add_u32 s3, s3, s6")
    e(f"s_add_u32 s3, s3, {WS_P_OFF}")
    e(f"s_add_u32 {sr(sP)}, s36, s3")
    e(f"s_addc_u32 {sr(sP+1)}, s37, 0")
    e(f"s_mov_b32 {sr(sP+2)}, {192*2560}")
    e(f"s_mov_b32 {sr(sP+3)}, 0x00020000")
    e(f"s_mul_i32 {sr(s_wl)}, {sr(s_w)}, 5120")

    LANE, HH, L31, GP, R, C = 1, 2, 3, 4, 5, 6
    t0, t1, t2 = T, T + 1, T + 2
    e(f"v_and_b32 {vr(LANE)}, 63, v0")
    e(f"v_lshrrev_b32 {vr(HH)}, 5, {vr(LANE)}")
    e(f"v_and_b32 {vr(L31)}, 31, {vr(LANE)}")
    e(f"v_bfe_u32 {vr(GP)}, {vr(LANE)}, 4, 1")
    e(f"v_bfe_u32 {vr(R)}, {vr(LANE)}, 2, 2")
    e(f"v_and_b32 {vr(C)}, 3, {vr(LANE)}")
    e("s_movk_i32 s3, 3277")
    e(f"s_mul_i32 s6, {sr(s_w)}, {16*1280}")
    for i in range(5):
        e(f"v_add_u32 {vr(t0)}, {64*i}, {vr(LANE)}")
        e(f"v_mul_lo_u32 {vr(t1)}, {vr(t0)}, s3")
        e(f"v_lshrrev_b32 {vr(t1)}, 16, {vr(t1)}")
        e(f"v_mul_u32_u24 {vr(t2)}, 20, {vr(t1)}")
        e(f"v_sub_u32 {vr(t0)}, {vr(t0)}, {vr(t2)}")
        e(f"v_lshlrev_b32 {vr(t0)}, 4, {vr(t0)}")
        e(f"v_mul_u32_u24 {vr(t1)}, 1280, {vr(t1)}")
        e(f"v_add3_u32 {vr(VO+i)}, {vr(t0)}, {vr(t1)}, s6")
    e(f"v_lshlrev_b32 {vr(t0)}, 2, {vr(HH)}")
    e(f"v_add_u32 {vr(t0)}, {vr(t0)}, {vr(R)}")
    e(f"v_mul_u32_u24 {vr(t0)}, 320, {vr(t0)}")
    e(f"v_lshlrev_b32 {vr(t1)}, 5, {vr(GP)}")
    e(f"v_lshlrev_b32 {vr(t2)}, 3, {vr(C)}")
    e(f"v_add3_u32 {vr(BBASE)}, {vr(t0)}, {vr(t1)}, {vr(t2)}")
    e(f"s_mul_i32 s3, {sr(s_w)}, 393216")
    e(f"s_mul_i32 s6, {sr(s_ks)}, {96*1024}")
    e("s_add_u32 s3, s3, s6")
    e(f"v_lshlrev_b32 {vr(VOA)}, 4, {vr(LANE)}")
    e(f"v_add_u32 {vr(VOA)}, s3, {vr(VOA)}")
    e(f"s_mul_i32 s3, {sr(s_w)}, {32*2560}")
    e(f"s_mul_i32 s6, {sr(s_nc)}, 640")
    e("s_add_u32 s3, s3, s6")
    e(f"v_mul_u32_u24 {vr(t0)}, {4*2560}, {vr(HH)}")
    e(f"v_lshlrev_b32 {vr(t1)}, 2, {vr(L31)}")
    e(f"v_add3_u32 {vr(VOP)}, {vr(t0)}, {vr(t1)}, s3")

    NST = 16

    def issue_dma(st):
        base = (st % 4) * 30720
        for i in range(5):
            e(f"s_add_u32 {sr(s_t0)}, {sr(s_wl)}, {base + 1024*i}")
            e(f"s_mov_b32 m0, {sr(s_t0)}")
            e(f"s_mov_b32 {sr(s_t1)}, {st*96*1280}")
            e(f"buffer_load_dwordx4 {vr(VO+i)}, {sr(sWO,4)}, {sr(s_t1)} offen lds")

    def issue_a(st):
        rs = AS + (st % 3) * 24
        e(f"s_mov_b32 {sr(s_t1)}, {st*6*1024}")
        for t in range(4):
            e(f"buffer_load_dwordx4 {vr(rs+4*t,4)}, {vr(VOA)}, {sr(sA,4)}, {sr(s_t1)} offen offset:{1024*t}")
        e(f"s_mov_b32 {sr(s_t1)}, {st*6*1024+4096}")
        for t in range(4, 6):
            e(f"buffer_load_dwordx4 {vr(rs+4*t,4)}, {vr(VOA)}, {sr(sA,4)}, {sr(s_t1)} offen offset:{1024*(t-4)}")

    for i in range(80):
        e(f"v_mov_b32 {vr(ACC+i)}, 0")
    seq = []

    def do(kind, st):
        if st >= NST:
            return
        if kind == 'A':
            issue_a(st)
            seq.append(('A', st, 6))
        else:
            issue_dma(st)
            seq.append(('D', st, 5))
    do('D', 0)
    do('A', 0)
    do('D', 1)
    do('A', 1)
    do('D', 2)
    for st in range(NST):
        idx = max(i for i, x in enumerate(seq) if (x[0], x[1]) in (('A', st), ('D', st)))
        n = sum(x[2] for x in seq[idx + 1:])
        e(f"s_waitcnt vmcnt({n})")
        e("s_barrier")
        do('A', st + 2)
        do('D', st + 3)
        e(f"v_add_u32 {vr(BCUR)}, {(st%4)*30720}, {vr(BBASE)}")
        rs = AS + (st % 3) * 24
        items = []
        for t in range(6):
            for nt in range(5):
                imm = 5120 * t + 64 * nt
                reads = [(0, 2, "ds_read_b64_tr_b16 {dst}, " + f"{vr(BCUR)} offset:{imm}"),
                         (2, 2, "ds_read_b64_tr_b16 {dst}, " + f"{vr(BCUR)} offset:{imm+2560}")]

                def mf(b, t=t, nt=nt, rs=rs):
                    e(f"v_mfma_f32_32x32x16_bf16 {vr(ACC+16*nt,16)}, {vr(rs+4*t,4)}, {vr(b,4)}, {vr(ACC+16*nt,16)}")
                items.append(('mfma', reads, mf))
        emit_pipeline(e, items, BUFS, 4)
    e("s_nop 15")
    for nt in range(5):
        for r in range(16):
            j, i = r >> 2, r & 3
            off = (8 * j + i) * 2560 + nt * 128
            e(f"s_mov_b32 {sr(s_t1)}, {off}")
            e(f"buffer_store_dword {vr(ACC+16*nt+r)}, {vr(VOP)}, {sr(sP,4)}, {sr(s_t1)} offen")
    e("s_waitcnt vmcnt(0)")
    e.label("L_k2_end")
    e("s_endpgm")


def gen_k3(e):
    e.raw(".globl k3_kernel")
    e.raw(".p2align 8")
    e.raw(".type k3_kernel,@function")
    e.label("k3_kernel")
    e("s_cmp_ge_u32 s2, 960")
    e("s_cbranch_scc1 L_k3_end")
    e("s_load_dwordx2 s[4:5], s[0:1], 80")
    e("s_load_dwordx2 s[6:7], s[0:1], 96")
    e("s_waitcnt lgkmcnt(0)")
    e("s_mov_b32 s8, s4")
    e("s_mov_b32 s9, s5")
    e("s_mov_b32 s10, 3932160")
    e("s_mov_b32 s11, 0x00020000")
    e(f"s_add_u32 s12, s6, {WS_P_OFF}")
    e("s_addc_u32 s13, s7, 0")
    e("s_mov_b32 s14, 31457280")
    e("s_mov_b32 s15, 0x00020000")
    e("s_cmp_ge_u32 s2, 480")
    e("s_cselect_b32 s16, 1, 0")
    e("s_mul_i32 s17, s16, 480")
    e("s_sub_u32 s17, s2, s17")
    e("s_lshl_b32 s17, s17, 8")
    e("v_add_u32 v1, s17, v0")
    e("v_lshlrev_b32 v2, 5, v1")
    e("s_mul_i32 s18, s16, 3932160")
    for ks in range(4):
        e(f"s_add_u32 s19, s18, {ks*2*3932160}")
        e(f"buffer_load_dwordx4 v[{8+8*ks}:{11+8*ks}], v2, s[12:15], s19 offen")
        e(f"buffer_load_dwordx4 v[{12+8*ks}:{15+8*ks}], v2, s[12:15], s19 offen offset:16")
    e("s_mov_b32 s20, 0xCCCCCCCD")
    e("v_mul_hi_u32 v3, v1, s20")
    e("v_lshrrev_b32 v3, 6, v3")
    e("v_mul_u32_u24 v4, 80, v3")
    e("v_sub_u32 v4, v1, v4")
    e("v_mul_u32_u24 v3, 2560, v3")
    e("v_lshlrev_b32 v4, 4, v4")
    e("s_mul_i32 s21, s16, 1280")
    e("v_add3_u32 v3, v3, v4, s21")
    e("s_waitcnt vmcnt(0)")
    for i in range(8):
        e(f"v_add_f32 v{8+i}, v{8+i}, v{16+i}")
        e(f"v_add_f32 v{24+i}, v{24+i}, v{32+i}")
    for i in range(8):
        e(f"v_add_f32 v{8+i}, v{8+i}, v{24+i}")
    for i in range(4):
        e(f"v_cvt_pk_bf16_f32 v{40+i}, v{8+2*i}, v{9+2*i}")
    e("buffer_store_dwordx4 v[40:43], v3, s[8:11], 0 offen")
    e("s_waitcnt vmcnt(0)")
    e.label("L_k3_end")
    e("s_endpgm")


def desc(name, vgpr, sgpr=96):
    acc = (vgpr + 3) // 4 * 4
    return f""".amdhsa_kernel {name}
  .amdhsa_next_free_vgpr {vgpr}
  .amdhsa_next_free_sgpr {sgpr}
  .amdhsa_accum_offset {acc}
  .amdhsa_group_segment_fixed_size 0
  .amdhsa_kernarg_size 104
  .amdhsa_user_sgpr_count 2
  .amdhsa_user_sgpr_kernarg_segment_ptr 1
  .amdhsa_system_sgpr_workgroup_id_x 1
.end_amdhsa_kernel
"""


def main():
    e = Emitter()
    out = HEADER
    out += "; @launch kernel=k1_kernel grid=(512,1,1) block=(384,1,1) lds=147456\n"
    out += "; @launch kernel=k2_kernel grid=(256,1,1) block=(384,1,1) lds=122880\n"
    out += "; @launch kernel=k3_kernel grid=(960,1,1) block=(256,1,1) lds=0\n"
    out += '.amdgcn_target "amdgcn-amd-amdhsa--gfx950"\n.text\n'
    gen_k1(e)
    gen_k2(e)
    gen_k3(e)
    out += e.text()
    out += '.section .rodata,"a"\n.p2align 6\n'
    out += desc("k1_kernel", 256)
    out += ".p2align 6\n" + desc("k2_kernel", 192)
    out += ".p2align 6\n" + desc("k3_kernel", 48)
    path = sys.argv[1] if len(sys.argv) > 1 else f"cdna_kernels/{NAME}.s"
    open(path, "w").write(out)


if __name__ == "__main__":
    main()
```

```python
import math
import struct
import sys

from gen import HEADER, NAME, WS_P_OFF, Emitter, vr, sr, gen_k3, desc


def ar(a, n=1):
    return f"a{a}" if n == 1 else f"a[{a}:{a+n-1}]"


def f32bits(x):
    return struct.unpack("<I", struct.pack("<f", x))[0]


def mfma_stream(groups, bufs, lookahead):
    out = []
    nb = len(bufs)
    assert lookahead < nb
    issued = 0
    last = {}

    def issue(o):
        nonlocal issued
        b = bufs[o % nb]
        for (roff, rn, fmt) in groups[o][0]:
            out.append(('i', fmt.format(dst=vr(b + roff, rn))))
            issued += 1
        last[o] = issued
    nxt = 0
    while nxt < min(lookahead, len(groups)):
        issue(nxt)
        nxt += 1
    for o, (reads, mf) in enumerate(groups):
        if nxt < len(groups):
            issue(nxt)
            nxt += 1
        n = issued - last[o]
        assert n <= 15
        out.append(('i', f"s_waitcnt lgkmcnt({n})"))
        for fn in mf:
            out.append(('m', fn(bufs[o % nb])))
    return out


def merge(e, ms, side, start=0, end=None):
    nm = sum(1 for k, _ in ms if k == 'm')
    if end is None:
        end = nm
    span = max(1, end - start)
    ns = len(side)
    mi = 0
    si = 0
    for k, t in ms:
        e(t)
        if k == 'm':
            if mi >= start:
                tgt = min(ns, ((mi - start + 1) * ns + span - 1) // span)
                while si < tgt:
                    s = side[si]
                    if s.endswith(":"):
                        e.label(s[:-1])
                    else:
                        e(s)
                    si += 1
            mi += 1
    while si < ns:
        s = side[si]
        if s.endswith(":"):
            e.label(s[:-1])
        else:
            e(s)
        si += 1


def gen_k1(e):
    QF = 0
    SB = 72
    PB = 120
    BUFS = [144 + 4 * i for i in range(8)]
    KAB, VAB, KAC, VAC = 176, 178, 182, 184
    WAB, XAB = 188, 192
    VOKV, VOW, VOX = 193, 196, 199
    MC, MTHR, LS, AL, MR = 200, 203, 206, 209, 212
    T = 215
    VOUT = 227

    sX, sW, sK, sV, sO = 40, 44, 48, 52, 56
    s_n, s_cur, s_iss, s_xoff, s_woff, s_koff, s_voff, s_wlds, s_t0, s_t1, s_c, s_thr, s_flag = range(60, 73)
    s_b, s_h, s_blk, s_w = 73, 74, 75, 76
    sF = 80

    c2 = (192 ** -0.5) * math.log2(math.e)

    e.raw(".globl k1_kernel")
    e.raw(".p2align 8")
    e.raw(".type k1_kernel,@function")
    e.label("k1_kernel")
    e("s_cmp_ge_u32 s2, 512")
    e("s_cbranch_scc1 L_k1_end")
    e("s_load_dwordx16 s[16:31], s[0:1], 0")
    e("s_load_dwordx4 s[32:35], s[0:1], 64")
    e("s_load_dwordx2 s[36:37], s[0:1], 96")
    e("s_and_b32 s3, s2, 7")
    e("s_lshr_b32 s4, s2, 3")
    e(f"s_and_b32 {sr(s_b)}, s4, 7")
    e("s_lshr_b32 s4, s4, 3")
    e("s_lshl_b32 s3, s3, 3")
    e("s_add_u32 s3, s3, s4")
    e(f"s_lshr_b32 {sr(s_blk)}, s3, 5")
    e(f"s_and_b32 {sr(s_h)}, s3, 31")
    e(f"v_lshrrev_b32 {vr(T)}, 6, v0")
    e("s_nop 0")
    e(f"v_readfirstlane_b32 {sr(s_w)}, {vr(T)}")
    e("s_waitcnt lgkmcnt(0)")
    e(f"s_cmp_eq_u32 {sr(s_blk)}, 0")
    for i, (a, b) in enumerate(((16, 26), (17, 27), (18, 28), (19, 29), (20, 30), (21, 31), (22, 32), (23, 33))):
        e(f"s_cselect_b32 s{4+i}, s{a}, s{b}")
    e(f"s_mul_i32 s3, {sr(s_b)}, 245760")
    e(f"s_add_u32 {sr(sX)}, s4, s3")
    e(f"s_addc_u32 {sr(sX+1)}, s5, 0")
    e(f"s_mov_b32 {sr(sX+2)}, 245760")
    e(f"s_mov_b32 {sr(sX+3)}, 0x00020000")
    e(f"s_mul_i32 s3, {sr(s_h)}, 384")
    e(f"s_add_u32 {sr(sW)}, s10, s3")
    e(f"s_addc_u32 {sr(sW+1)}, s11, 0")
    e(f"s_sub_u32 {sr(sW+2)}, 7864320, s3")
    e(f"s_mov_b32 {sr(sW+3)}, 0x00020000")
    e(f"s_lshl_b32 s3, {sr(s_b)}, 5")
    e(f"s_add_u32 s3, s3, {sr(s_h)}")
    e("s_mul_i32 s3, s3, 196608")
    e(f"s_add_u32 {sr(sK)}, s6, s3")
    e(f"s_addc_u32 {sr(sK+1)}, s7, 0")
    e(f"s_mov_b32 {sr(sK+2)}, 196608")
    e(f"s_mov_b32 {sr(sK+3)}, 0x00020000")
    e(f"s_add_u32 {sr(sV)}, s8, s3")
    e(f"s_addc_u32 {sr(sV+1)}, s9, 0")
    e(f"s_mov_b32 {sr(sV+2)}, 196608")
    e(f"s_mov_b32 {sr(sV+3)}, 0x00020000")
    e(f"s_lshl_b32 s3, {sr(s_blk)}, 3")
    e(f"s_add_u32 s3, s3, {sr(s_b)}")
    e("s_mul_i32 s3, s3, 2359296")
    e(f"s_add_u32 {sr(sO)}, s36, s3")
    e(f"s_addc_u32 {sr(sO+1)}, s37, 0")
    e(f"s_mov_b32 {sr(sO+2)}, 2359296")
    e(f"s_mov_b32 {sr(sO+3)}, 0x00020000")
    e(f"s_mul_i32 {sr(s_wlds)}, {sr(s_w)}, 3072")

    LANE, G, L15, R, C = 1, 2, 3, 4, 5
    t0, t1, t2, t3, t4 = T, T + 1, T + 2, T + 3, T + 4
    e(f"v_and_b32 {vr(LANE)}, 63, v0")
    e(f"v_lshrrev_b32 {vr(G)}, 4, {vr(LANE)}")
    e(f"v_and_b32 {vr(L15)}, 15, {vr(LANE)}")
    e(f"v_bfe_u32 {vr(R)}, {vr(LANE)}, 2, 2")
    e(f"v_and_b32 {vr(C)}, 3, {vr(LANE)}")
    e("s_movk_i32 s3, 2731")
    e(f"s_lshl_b32 s4, {sr(s_w)}, 3")
    for i in range(3):
        e(f"v_add_u32 {vr(t0)}, {64*i}, {vr(LANE)}")
        e(f"v_mul_lo_u32 {vr(t1)}, {vr(t0)}, s3")
        e(f"v_lshrrev_b32 {vr(t1)}, 16, {vr(t1)}")
        e(f"v_mul_u32_u24 {vr(t2)}, 24, {vr(t1)}")
        e(f"v_sub_u32 {vr(t0)}, {vr(t0)}, {vr(t2)}")
        e(f"v_add_u32 {vr(t1)}, s4, {vr(t1)}")
        e(f"v_and_b32 {vr(t2)}, 6, {vr(t1)}")
        e(f"v_xor_b32 {vr(t2)}, {vr(t0)}, {vr(t2)}")
        e(f"v_lshlrev_b32 {vr(t2)}, 4, {vr(t2)}")
        e(f"v_mul_u32_u24 {vr(t3)}, 384, {vr(t1)}")
        e(f"v_add_u32 {vr(VOKV+i)}, {vr(t2)}, {vr(t3)}")
        e(f"v_and_b32 {vr(t2)}, 2, {vr(t1)}")
        e(f"v_bfe_u32 {vr(t3)}, {vr(t1)}, 3, 1")
        e(f"v_lshlrev_b32 {vr(t3)}, 2, {vr(t3)}")
        e(f"v_or_b32 {vr(t2)}, {vr(t2)}, {vr(t3)}")
        e(f"v_xor_b32 {vr(t2)}, {vr(t0)}, {vr(t2)}")
        e(f"v_lshlrev_b32 {vr(t2)}, 4, {vr(t2)}")
        e(f"v_mul_u32_u24 {vr(t3)}, 12288, {vr(t1)}")
        e(f"v_add_u32 {vr(VOW+i)}, {vr(t2)}, {vr(t3)}")
    e(f"v_lshrrev_b32 {vr(t0)}, 2, {vr(LANE)}")
    e(f"v_lshrrev_b32 {vr(t1)}, 1, {vr(t0)}")
    e(f"v_and_b32 {vr(t1)}, 2, {vr(t1)}")
    e(f"v_xor_b32 {vr(t1)}, {vr(C)}, {vr(t1)}")
    e(f"v_lshlrev_b32 {vr(t1)}, 4, {vr(t1)}")
    e(f"v_mul_u32_u24 {vr(t0)}, 1280, {vr(t0)}")
    e(f"s_mul_i32 s4, {sr(s_w)}, {48*1280}")
    e(f"v_add3_u32 {vr(VOX)}, {vr(t0)}, {vr(t1)}, s4")
    e(f"v_and_b32 {vr(t2)}, 6, {vr(L15)}")
    e(f"v_mul_u32_u24 {vr(t3)}, 384, {vr(L15)}")
    for tp in range(2):
        e(f"v_add_u32 {vr(t0)}, {4*tp}, {vr(G)}")
        e(f"v_xor_b32 {vr(t0)}, {vr(t0)}, {vr(t2)}")
        e(f"v_lshlrev_b32 {vr(t0)}, 4, {vr(t0)}")
        e(f"v_add3_u32 {vr(KAB+tp)}, {vr(t0)}, {vr(t3)}, 0")
    e(f"v_lshlrev_b32 {vr(t4)}, 2, {vr(G)}")
    e(f"v_add_u32 {vr(t4)}, {vr(t4)}, {vr(R)}")
    e(f"v_and_b32 {vr(t2)}, 6, {vr(t4)}")
    e(f"v_mul_u32_u24 {vr(t3)}, 384, {vr(t4)}")
    e(f"v_and_b32 {vr(t1)}, 1, {vr(C)}")
    e(f"v_lshlrev_b32 {vr(t1)}, 3, {vr(t1)}")
    e(f"v_add_u32 {vr(t3)}, {vr(t3)}, {vr(t1)}")
    for d4 in range(4):
        e(f"v_lshrrev_b32 {vr(t0)}, 1, {vr(C)}")
        e(f"v_add_u32 {vr(t0)}, {2*d4}, {vr(t0)}")
        e(f"v_xor_b32 {vr(t0)}, {vr(t0)}, {vr(t2)}")
        e(f"v_lshlrev_b32 {vr(t0)}, 4, {vr(t0)}")
        e(f"v_add_u32 {vr(VAB+d4)}, {vr(t0)}, {vr(t3)}")
    e(f"v_lshlrev_b32 {vr(t4)}, 3, {vr(G)}")
    e(f"v_add_u32 {vr(t4)}, {vr(t4)}, {vr(R)}")
    e(f"v_and_b32 {vr(t2)}, 2, {vr(R)}")
    e(f"v_and_b32 {vr(t0)}, 1, {vr(G)}")
    e(f"v_lshlrev_b32 {vr(t0)}, 2, {vr(t0)}")
    e(f"v_or_b32 {vr(t2)}, {vr(t2)}, {vr(t0)}")
    e(f"v_mul_u32_u24 {vr(t3)}, 384, {vr(t4)}")
    e(f"v_add_u32 {vr(t3)}, {vr(t3)}, {vr(t1)}")
    for d4 in range(4):
        e(f"v_lshrrev_b32 {vr(t0)}, 1, {vr(C)}")
        e(f"v_add_u32 {vr(t0)}, {2*d4}, {vr(t0)}")
        e(f"v_xor_b32 {vr(t0)}, {vr(t0)}, {vr(t2)}")
        e(f"v_lshlrev_b32 {vr(t0)}, 4, {vr(t0)}")
        e(f"v_add3_u32 {vr(WAB+d4)}, {vr(t0)}, {vr(t3)}, 0")
    e(f"v_lshrrev_b32 {vr(t0)}, 1, {vr(L15)}")
    e(f"v_and_b32 {vr(t0)}, 2, {vr(t0)}")
    e(f"v_xor_b32 {vr(t0)}, {vr(G)}, {vr(t0)}")
    e(f"v_lshlrev_b32 {vr(t0)}, 4, {vr(t0)}")
    e(f"v_lshlrev_b32 {vr(t1)}, 6, {vr(L15)}")
    e(f"s_mul_i32 s4, {sr(s_w)}, {48*64}")
    e(f"v_add3_u32 {vr(XAB)}, {vr(t0)}, {vr(t1)}, s4")
    e(f"v_lshlrev_b32 {vr(VOUT)}, 4, {vr(LANE)}")
    e(f"s_mul_i32 s3, {sr(s_w)}, {3*192*1024}")
    e(f"s_mul_i32 s4, {sr(s_h)}, 6144")
    e("s_add_u32 s3, s3, s4")
    e(f"v_add_u32 {vr(VOUT)}, s3, {vr(VOUT)}")

    def dma(srd, vo_list, soff_s, soff_add, unit_add):
        ins = []
        for i in range(3):
            ins.append(f"s_add_u32 {sr(s_t0)}, {sr(s_iss)}, {sr(s_wlds)}")
            add = unit_add + 1024 * i
            if add:
                ins.append(f"s_add_u32 {sr(s_t0)}, {sr(s_t0)}, {add}")
            ins.append(f"s_mov_b32 m0, {sr(s_t0)}")
            if len(vo_list) == 3:
                vo = vo_list[i]
                sa = soff_add
            else:
                vo = vo_list[0]
                sa = soff_add + i * 16 * 1280
            ins.append(f"s_add_u32 {sr(s_t1)}, {sr(soff_s)}, {sa}")
            ins.append(f"buffer_load_dwordx4 {vr(vo)}, {sr(srd,4)}, {sr(s_t1)} offen lds")
        return ins

    def adv_iss():
        return [f"s_add_u32 {sr(s_iss)}, {sr(s_iss)}, 24576",
                f"s_cmp_eq_u32 {sr(s_iss)}, 147456",
                f"s_cselect_b32 {sr(s_iss)}, 0, {sr(s_iss)}"]

    kvo = [VOKV, VOKV + 1, VOKV + 2]

    def issue_xw():
        ins = dma(sX, [VOX], s_xoff, 0, 0) + dma(sW, [VOW, VOW + 1, VOW + 2], s_woff, 0, 12288)
        ins += [f"s_add_u32 {sr(s_xoff)}, {sr(s_xoff)}, 64", f"s_add_u32 {sr(s_woff)}, {sr(s_woff)}, {32*12288}"]
        return ins + adv_iss()

    def issue_kk():
        ins = dma(sK, kvo, s_koff, 0, 0) + dma(sK, kvo, s_koff, 12288, 12288)
        ins += [f"s_add_u32 {sr(s_koff)}, {sr(s_koff)}, 24576"]
        return ins + adv_iss()

    def issue_vk():
        ins = dma(sV, kvo, s_voff, 0, 0) + dma(sK, kvo, s_koff, 0, 12288)
        ins += [f"s_add_u32 {sr(s_voff)}, {sr(s_voff)}, 12288", f"s_add_u32 {sr(s_koff)}, {sr(s_koff)}, 12288"]
        return ins + adv_iss()

    def adv_cur():
        e(f"s_add_u32 {sr(s_cur)}, {sr(s_cur)}, 24576")
        e(f"s_cmp_eq_u32 {sr(s_cur)}, 147456")
        e(f"s_cselect_b32 {sr(s_cur)}, 0, {sr(s_cur)}")

    for s in (s_xoff, s_woff, s_koff, s_voff, s_cur, s_iss, s_n, s_flag):
        e(f"s_mov_b32 {sr(s)}, 0")
    e(f"s_mov_b32 {sr(s_c)}, 0x{f32bits(c2):08x}")
    e(f"s_mov_b32 {sr(s_thr)}, 0x{f32bits(8.0/c2):08x}")
    for _ in range(5):
        for ins in issue_xw():
            e(ins)
    for i in range(144):
        e(f"v_accvgpr_write_b32 {ar(i)}, 0")

    XF = SB

    def q_body(issue):
        e("s_waitcnt vmcnt(24)")
        e("s_barrier")
        e(f"v_add_u32 {vr(KAC)}, {sr(s_cur)}, {vr(XAB)}")
        e(f"s_add_u32 {sr(s_t0)}, {sr(s_cur)}, 12288")
        for i in range(4):
            e(f"v_add_u32 {vr(VAC+i)}, {sr(s_t0)}, {vr(WAB+i)}")
        for qt in range(3):
            e(f"ds_read_b128 {vr(XF+4*qt,4)}, {vr(KAC)} offset:{1024*qt}")
        groups = []
        for dt in range(12):
            imm = 128 * (dt >> 2)
            reads = [(0, 2, "ds_read_b64_tr_b16 {dst}, " + f"{vr(VAC+(dt&3))} offset:{imm}"),
                     (2, 2, "ds_read_b64_tr_b16 {dst}, " + f"{vr(VAC+(dt&3))} offset:{imm+1536}")]
            mf = []
            for qt in range(3):
                a = (dt * 3 + qt) * 4
                mf.append(lambda b, a=a, qt=qt: f"v_mfma_f32_16x16x32_bf16 {ar(a,4)}, {vr(b,4)}, {vr(XF+4*qt,4)}, {ar(a,4)}")
            groups.append((reads, mf))
        ms = mfma_stream(groups, BUFS, 4)
        merge(e, ms, issue, 0, 24)
        adv_cur()

    e.label("L_k1_q1")
    q_body(issue_xw())
    e(f"s_add_u32 {sr(s_n)}, {sr(s_n)}, 1")
    e(f"s_cmp_lt_u32 {sr(s_n)}, 15")
    e("s_cbranch_scc1 L_k1_q1")
    q_body(issue_kk())
    e(f"s_mov_b32 {sr(s_n)}, 0")
    e.label("L_k1_q2")
    q_body(issue_vk())
    e(f"s_add_u32 {sr(s_n)}, {sr(s_n)}, 1")
    e(f"s_cmp_lt_u32 {sr(s_n)}, 4")
    e("s_cbranch_scc1 L_k1_q2")

    e("s_nop 7")
    for Gd in range(6):
        for qt in range(3):
            qa = QF + (Gd * 3 + qt) * 4
            for half in range(2):
                a = ((2 * Gd + half) * 3 + qt) * 4
                for r in range(4):
                    e(f"v_accvgpr_read_b32 {vr(T+4*half+r)}, {ar(a+r)}")
            e(f"v_cvt_pk_bf16_f32 {vr(qa)}, {vr(T)}, {vr(T+1)}")
            e(f"v_cvt_pk_bf16_f32 {vr(qa+1)}, {vr(T+2)}, {vr(T+3)}")
            e(f"v_cvt_pk_bf16_f32 {vr(qa+2)}, {vr(T+4)}, {vr(T+5)}")
            e(f"v_cvt_pk_bf16_f32 {vr(qa+3)}, {vr(T+6)}, {vr(T+7)}")
            e("s_nop 1")
            e(f"v_permlane32_swap_b32 {vr(qa)}, {vr(qa+2)}")
            e(f"v_permlane32_swap_b32 {vr(qa+1)}, {vr(qa+3)}")
            e("s_nop 1")
            e(f"v_permlane16_swap_b32 {vr(qa)}, {vr(qa+2)}")
            e(f"v_permlane16_swap_b32 {vr(qa+1)}, {vr(qa+3)}")
    for i in range(144):
        e(f"v_accvgpr_write_b32 {ar(i)}, 0")
    for qt in range(3):
        e(f"v_mov_b32 {vr(MR+qt)}, 0xff800000")
        e(f"v_mov_b32 {vr(MTHR+qt)}, 0xff800000")
        e(f"v_mov_b32 {vr(MC+qt)}, 0")
        e(f"v_mov_b32 {vr(LS+qt)}, 0")
        e(f"v_mov_b32 {vr(AL+qt)}, 1.0")

    def qk_groups(sbuf, kaddr, koff):
        groups = []
        for kt in range(2):
            for t in range(6):
                imm = 128 * (t >> 1) + 6144 * kt + koff
                reads = [(0, 4, "ds_read_b128 {dst}, " + f"{vr(kaddr+(t&1))} offset:{imm}")]
                mf = []
                for qt in range(3):
                    d = SB + 24 * sbuf + (kt * 3 + qt) * 4
                    c = "0" if t == 0 else vr(d, 4)
                    mf.append(lambda b, d=d, c=c, t=t, qt=qt:
                              f"v_mfma_f32_16x16x32_bf16 {vr(d,4)}, {vr(b,4)}, {vr(QF+(t*3+qt)*4,4)}, {c}")
                groups.append((reads, mf))
        return groups

    def pv_groups(pbuf):
        groups = []
        for dt in range(12):
            imm = 128 * (dt >> 2)
            reads = [(0, 2, "ds_read_b64_tr_b16 {dst}, " + f"{vr(VAC+(dt&3))} offset:{imm}"),
                     (2, 2, "ds_read_b64_tr_b16 {dst}, " + f"{vr(VAC+(dt&3))} offset:{imm+6144}")]
            mf = []
            for qt in range(3):
                a = (dt * 3 + qt) * 4
                p = PB + 12 * pbuf + 4 * qt
                mf.append(lambda b, a=a, p=p: f"v_mfma_f32_16x16x32_bf16 {ar(a,4)}, {vr(b,4)}, {vr(p,4)}, {ar(a,4)}")
            groups.append((reads, mf))
        return groups

    slow_blocks = []

    def sm_list(buf):
        lab = e.newlabel("k1_sm")
        ins = []
        MX = T

        def sreg(qt, i):
            return SB + 24 * buf + ((i >> 2) * 3 + qt) * 4 + (i & 3)
        for qt in range(3):
            ins.append(f"v_max3_f32 {vr(MX+qt)}, {vr(sreg(qt,0))}, {vr(sreg(qt,1))}, {vr(sreg(qt,2))}")
            ins.append(f"v_max3_f32 {vr(MX+qt)}, {vr(MX+qt)}, {vr(sreg(qt,3))}, {vr(sreg(qt,4))}")
            ins.append(f"v_max3_f32 {vr(MX+qt)}, {vr(MX+qt)}, {vr(sreg(qt,5))}, {vr(sreg(qt,6))}")
            ins.append(f"v_max_f32 {vr(MX+qt)}, {vr(MX+qt)}, {vr(sreg(qt,7))}")
        for qt in range(3):
            ins.append(f"v_cmp_gt_f32 {sr(sF+2*qt,2)}, {vr(MX+qt)}, {vr(MTHR+qt)}")
        ins.append(f"s_or_b64 {sr(sF,2)}, {sr(sF,2)}, {sr(sF+2,2)}")
        ins.append(f"s_or_b64 {sr(sF,2)}, {sr(sF,2)}, {sr(sF+4,2)}")
        ins.append(f"s_cbranch_scc1 {lab}_slow")
        ins.append(f"{lab}_ret:")
        for qt in range(3):
            for i in range(8):
                ins.append(f"v_fma_f32 {vr(sreg(qt,i))}, {vr(sreg(qt,i))}, {sr(s_c)}, -{vr(MC+qt)}")
        for qt in range(3):
            for i in range(8):
                ins.append(f"v_exp_f32 {vr(sreg(qt,i))}, {vr(sreg(qt,i))}")
        for qt in range(3):
            ins.append(f"v_add_f32 {vr(MX+3+qt)}, {vr(sreg(qt,0))}, {vr(sreg(qt,1))}")
        for i in range(2, 8):
            for qt in range(3):
                ins.append(f"v_add_f32 {vr(MX+3+qt)}, {vr(MX+3+qt)}, {vr(sreg(qt,i))}")
        for qt in range(3):
            for i in range(4):
                ins.append(f"v_cvt_pk_bf16_f32 {vr(PB+12*buf+4*qt+i)}, {vr(sreg(qt,2*i))}, {vr(sreg(qt,2*i+1))}")
        for qt in range(3):
            ins.append(f"v_add_f32 {vr(LS+qt)}, {vr(LS+qt)}, {vr(MX+3+qt)}")
        sb = [f"{lab}_slow:"]
        tt = T + 6
        for qt in range(3):
            sb.append(f"v_mov_b32 {vr(tt)}, {vr(MX+qt)}")
            sb.append("s_nop 1")
            sb.append(f"v_permlane32_swap_b32 {vr(MX+qt)}, {vr(tt)}")
            sb.append(f"v_max_f32 {vr(MX+qt)}, {vr(MX+qt)}, {vr(tt)}")
            sb.append(f"v_mov_b32 {vr(tt)}, {vr(MX+qt)}")
            sb.append("s_nop 1")
            sb.append(f"v_permlane16_swap_b32 {vr(MX+qt)}, {vr(tt)}")
            sb.append(f"v_max_f32 {vr(MX+qt)}, {vr(MX+qt)}, {vr(tt)}")
            sb.append(f"v_max_f32 {vr(MX+qt)}, {vr(MX+qt)}, {vr(MR+qt)}")
            sb.append(f"v_sub_f32 {vr(tt)}, {vr(MR+qt)}, {vr(MX+qt)}")
            sb.append(f"v_mul_f32 {vr(tt)}, {sr(s_c)}, {vr(tt)}")
            sb.append(f"v_exp_f32 {vr(AL+qt)}, {vr(tt)}")
            sb.append(f"v_mov_b32 {vr(MR+qt)}, {vr(MX+qt)}")
            sb.append(f"v_add_f32 {vr(MTHR+qt)}, {sr(s_thr)}, {vr(MX+qt)}")
            sb.append(f"v_mul_f32 {vr(MC+qt)}, {sr(s_c)}, {vr(MX+qt)}")
            sb.append(f"v_mul_f32 {vr(LS+qt)}, {vr(LS+qt)}, {vr(AL+qt)}")
        sb.append(f"s_mov_b32 {sr(s_flag)}, 1")
        sb.append(f"s_branch {lab}_ret")
        slow_blocks.append(sb)
        return ins

    def rescale_check():
        lab = e.newlabel("k1_rs")
        e(f"s_cmp_eq_u32 {sr(s_flag)}, 0")
        e(f"s_cbranch_scc1 {lab}_skip")
        e("s_nop 7")
        for base in range(0, 144, 8):
            for i in range(8):
                e(f"v_accvgpr_read_b32 {vr(T+i)}, {ar(base+i)}")
            for i in range(8):
                qt = ((base + i) // 4) % 3
                e(f"v_mul_f32 {vr(T+i)}, {vr(T+i)}, {vr(AL+qt)}")
            for i in range(8):
                e(f"v_accvgpr_write_b32 {ar(base+i)}, {vr(T+i)}")
        e(f"s_mov_b32 {sr(s_flag)}, 0")
        e("s_nop 1")
        e.label(f"{lab}_skip")

    e("s_waitcnt vmcnt(24)")
    e("s_barrier")
    for i in range(2):
        e(f"v_add_u32 {vr(KAC+i)}, {sr(s_cur)}, {vr(KAB+i)}")
    g0 = qk_groups(0, KAC, 0)
    g1 = qk_groups(1, KAC, 12288)
    ms = mfma_stream(g0 + g1, BUFS, 3)
    side = issue_vk()
    nside0 = len(side)
    sm0 = sm_list(0)
    merge(e, ms[:], side, 0, 20)
    e("s_nop 7")
    for s in sm0:
        if s.endswith(":"):
            e.label(s[:-1])
        else:
            e(s)
    e(f"s_mov_b32 {sr(s_flag)}, 0")
    adv_cur()

    def a_body(j_par, do_qk, do_sm, do_sync):
        if do_sync:
            e("s_waitcnt vmcnt(24)")
            e("s_barrier")
        for i in range(4):
            e(f"v_add_u32 {vr(VAC+i)}, {sr(s_cur)}, {vr(VAB+i)}")
        if do_qk:
            e(f"s_add_u32 {sr(s_t0)}, {sr(s_cur)}, 12288")
            for i in range(2):
                e(f"v_add_u32 {vr(KAC+i)}, {sr(s_t0)}, {vr(KAB+i)}")
        groups = pv_groups(j_par)
        if do_qk:
            groups += qk_groups(j_par, KAC, 0)
        ms = mfma_stream(groups, BUFS, 4)
        side = issue_vk() if do_sync else []
        if do_sm:
            side = side + sm_list(1 - j_par)
        merge(e, ms, side)
        if do_sm:
            if not do_qk:
                e("s_nop 7")
            rescale_check()
        adv_cur()

    e(f"s_mov_b32 {sr(s_n)}, 0")
    e.label("L_k1_aloop")
    a_body(0, True, True, True)
    a_body(1, True, True, True)
    e(f"s_add_u32 {sr(s_n)}, {sr(s_n)}, 1")
    e(f"s_cmp_lt_u32 {sr(s_n)}, 7")
    e("s_cbranch_scc1 L_k1_aloop")
    a_body(0, False, True, True)
    a_body(1, False, False, True)

    tt = T + 8
    for qt in range(3):
        e(f"v_mov_b32 {vr(tt)}, {vr(LS+qt)}")
        e("s_nop 1")
        e(f"v_permlane32_swap_b32 {vr(LS+qt)}, {vr(tt)}")
        e(f"v_add_f32 {vr(LS+qt)}, {vr(LS+qt)}, {vr(tt)}")
        e(f"v_mov_b32 {vr(tt)}, {vr(LS+qt)}")
        e("s_nop 1")
        e(f"v_permlane16_swap_b32 {vr(LS+qt)}, {vr(tt)}")
        e(f"v_add_f32 {vr(LS+qt)}, {vr(LS+qt)}, {vr(tt)}")
        e(f"v_rcp_f32 {vr(LS+qt)}, {vr(LS+qt)}")
    e("s_nop 7")
    for qt in range(3):
        for Gd in range(6):
            qa = QF + (Gd * 3 + qt) * 4
            for half in range(2):
                a = ((2 * Gd + half) * 3 + qt) * 4
                for r in range(4):
                    e(f"v_accvgpr_read_b32 {vr(T+4*half+r)}, {ar(a+r)}")
            for i in range(8):
                e(f"v_mul_f32 {vr(T+i)}, {vr(T+i)}, {vr(LS+qt)}")
            for i in range(4):
                e(f"v_cvt_pk_bf16_f32 {vr(qa+i)}, {vr(T+2*i)}, {vr(T+2*i+1)}")
            e(f"s_mov_b32 s3, {qt*192*1024 + Gd*1024}")
            e(f"buffer_store_dwordx4 {vr(qa,4)}, {vr(VOUT)}, {sr(sO,4)}, s3 offen")
    e("s_waitcnt vmcnt(0)")
    e.label("L_k1_end")
    e("s_endpgm")
    for sb in slow_blocks:
        for s in sb:
            if s.endswith(":"):
                e.label(s[:-1])
            else:
                e(s)


def gen_k2(e):
    ACC = 0
    AS = 120
    BUFS = [192 + 4 * i for i in range(8)]
    VO = 224
    BB = 229
    BC = 231
    VOA = 233
    VOP = 234
    T = 235
    sWO, sA, sP = 40, 44, 48
    s_blk, s_ks, s_b, s_nc, s_w, s_wl, s_t0, s_t1 = 60, 61, 62, 63, 64, 65, 66, 67
    RING = 7
    NST = 24

    e.raw(".globl k2_kernel")
    e.raw(".p2align 8")
    e.raw(".type k2_kernel,@function")
    e.label("k2_kernel")
    e("s_cmp_ge_u32 s2, 256")
    e("s_cbranch_scc1 L_k2_end")
    e("s_load_dwordx2 s[16:17], s[0:1], 32")
    e("s_load_dwordx2 s[18:19], s[0:1], 72")
    e("s_load_dwordx2 s[36:37], s[0:1], 96")
    e("s_and_b32 s3, s2, 7")
    e(f"s_lshr_b32 {sr(s_blk)}, s3, 2")
    e(f"s_and_b32 {sr(s_ks)}, s3, 3")
    e("s_lshr_b32 s4, s2, 3")
    e(f"s_lshr_b32 {sr(s_b)}, s4, 2")
    e(f"s_and_b32 {sr(s_nc)}, s4, 3")
    e(f"v_lshrrev_b32 {vr(T)}, 6, v0")
    e("s_nop 0")
    e(f"v_readfirstlane_b32 {sr(s_w)}, {vr(T)}")
    e("s_waitcnt lgkmcnt(0)")
    e(f"s_cmp_eq_u32 {sr(s_blk)}, 0")
    e("s_cselect_b32 s4, s16, s18")
    e("s_cselect_b32 s5, s17, s19")
    e(f"s_mul_i32 s3, {sr(s_ks)}, {1536*1280}")
    e(f"s_mul_i32 s6, {sr(s_nc)}, 320")
    e("s_add_u32 s3, s3, s6")
    e(f"s_add_u32 {sr(sWO)}, s4, s3")
    e(f"s_addc_u32 {sr(sWO+1)}, s5, 0")
    e(f"s_sub_u32 {sr(sWO+2)}, 7864320, s3")
    e(f"s_mov_b32 {sr(sWO+3)}, 0x00020000")
    e(f"s_lshl_b32 s3, {sr(s_blk)}, 3")
    e(f"s_add_u32 s3, s3, {sr(s_b)}")
    e("s_mul_i32 s3, s3, 2359296")
    e(f"s_add_u32 {sr(sA)}, s36, s3")
    e(f"s_addc_u32 {sr(sA+1)}, s37, 0")
    e(f"s_mov_b32 {sr(sA+2)}, 2359296")
    e(f"s_mov_b32 {sr(sA+3)}, 0x00020000")
    e(f"s_lshl_b32 s3, {sr(s_ks)}, 1")
    e(f"s_add_u32 s3, s3, {sr(s_blk)}")
    e("s_mul_i32 s3, s3, 3932160")
    e(f"s_mul_i32 s6, {sr(s_b)}, {192*2560}")
    e("s_add_u32 s3, s3, s6")
    e(f"s_add_u32 s3, s3, {WS_P_OFF}")
    e(f"s_add_u32 {sr(sP)}, s36, s3")
    e(f"s_addc_u32 {sr(sP+1)}, s37, 0")
    e(f"s_mov_b32 {sr(sP+2)}, {192*2560}")
    e(f"s_mov_b32 {sr(sP+3)}, 0x00020000")
    e(f"s_mul_i32 {sr(s_wl)}, {sr(s_w)}, 5120")

    LANE, G, L15, R, C = 1, 2, 3, 4, 5
    t0, t1, t2, t3 = T, T + 1, T + 2, T + 3
    e(f"v_and_b32 {vr(LANE)}, 63, v0")
    e(f"v_lshrrev_b32 {vr(G)}, 4, {vr(LANE)}")
    e(f"v_and_b32 {vr(L15)}, 15, {vr(LANE)}")
    e(f"v_bfe_u32 {vr(R)}, {vr(LANE)}, 2, 2")
    e(f"v_and_b32 {vr(C)}, 3, {vr(LANE)}")
    e("s_movk_i32 s3, 3277")
    e(f"s_mul_i32 s6, {sr(s_w)}, {16*1280}")
    for i in range(5):
        e(f"v_add_u32 {vr(t0)}, {64*i}, {vr(LANE)}")
        e(f"v_mul_lo_u32 {vr(t1)}, {vr(t0)}, s3")
        e(f"v_lshrrev_b32 {vr(t1)}, 16, {vr(t1)}")
        e(f"v_mul_u32_u24 {vr(t2)}, 20, {vr(t1)}")
        e(f"v_sub_u32 {vr(t0)}, {vr(t0)}, {vr(t2)}")
        e(f"v_lshrrev_b32 {vr(t2)}, 1, {vr(t1)}")
        e(f"v_and_b32 {vr(t2)}, 2, {vr(t2)}")
        e(f"v_xor_b32 {vr(t0)}, {vr(t0)}, {vr(t2)}")
        e(f"v_lshlrev_b32 {vr(t0)}, 4, {vr(t0)}")
        e(f"v_mul_u32_u24 {vr(t1)}, 1280, {vr(t1)}")
        e(f"v_add3_u32 {vr(VO+i)}, {vr(t0)}, {vr(t1)}, s6")
    e(f"v_lshlrev_b32 {vr(t0)}, 2, {vr(G)}")
    e(f"v_add_u32 {vr(t0)}, {vr(t0)}, {vr(R)}")
    e(f"v_mul_u32_u24 {vr(t0)}, 320, {vr(t0)}")
    e(f"v_and_b32 {vr(t1)}, 1, {vr(C)}")
    e(f"v_lshlrev_b32 {vr(t1)}, 3, {vr(t1)}")
    e(f"v_add_u32 {vr(t0)}, {vr(t0)}, {vr(t1)}")
    e(f"v_and_b32 {vr(t2)}, 1, {vr(G)}")
    e(f"v_lshlrev_b32 {vr(t2)}, 1, {vr(t2)}")
    for par in range(2):
        e(f"v_lshrrev_b32 {vr(t1)}, 1, {vr(C)}")
        e(f"v_add_u32 {vr(t1)}, {2*par}, {vr(t1)}")
        e(f"v_xor_b32 {vr(t1)}, {vr(t1)}, {vr(t2)}")
        e(f"v_lshlrev_b32 {vr(t1)}, 4, {vr(t1)}")
        e(f"v_add_u32 {vr(BB+par)}, {vr(t0)}, {vr(t1)}")
    e(f"s_mul_i32 s3, {sr(s_w)}, {3*192*1024}")
    e(f"s_mul_i32 s6, {sr(s_ks)}, {48*1024}")
    e("s_add_u32 s3, s3, s6")
    e(f"v_lshlrev_b32 {vr(VOA)}, 4, {vr(LANE)}")
    e(f"v_add_u32 {vr(VOA)}, s3, {vr(VOA)}")
    e(f"s_mul_i32 s3, {sr(s_w)}, {48*2560}")
    e(f"s_mul_i32 s6, {sr(s_nc)}, 640")
    e("s_add_u32 s3, s3, s6")
    e(f"v_mul_u32_u24 {vr(t0)}, 2560, {vr(L15)}")
    e(f"v_lshlrev_b32 {vr(t1)}, 4, {vr(G)}")
    e(f"v_add3_u32 {vr(VOP)}, {vr(t0)}, {vr(t1)}, s3")

    def issue_dma(st):
        ins = []
        base = (st % RING) * 20480
        for i in range(5):
            ins.append(f"s_add_u32 {sr(s_t0)}, {sr(s_wl)}, {base + 1024*i}")
            ins.append(f"s_mov_b32 m0, {sr(s_t0)}")
            ins.append(f"s_mov_b32 {sr(s_t1)}, {st*64*1280}")
            ins.append(f"buffer_load_dwordx4 {vr(VO+i)}, {sr(sWO,4)}, {sr(s_t1)} offen lds")
        return ins

    def issue_a(st):
        ins = []
        rs = AS + (st % 3) * 24
        for qt in range(3):
            ins.append(f"s_mov_b32 {sr(s_t1)}, {qt*192*1024 + st*2*1024}")
            for k in range(2):
                ins.append(f"buffer_load_dwordx4 {vr(rs+(k*3+qt)*4,4)}, {vr(VOA)}, {sr(sA,4)}, {sr(s_t1)} offen offset:{1024*k}")
        return ins

    for i in range(120):
        e(f"v_mov_b32 {vr(ACC+i)}, 0")
    seq = []

    def do(kind, st):
        if st >= NST:
            return []
        seq.append((kind, st, 6 if kind == 'A' else 5))
        return issue_a(st) if kind == 'A' else issue_dma(st)
    pro = do('D', 0) + do('A', 0) + do('D', 1) + do('A', 1)
    for s_ in range(2, RING - 1):
        pro += do('D', s_)
    for ins in pro:
        e(ins)
    for st in range(NST):
        idx = max(i for i, x in enumerate(seq) if (x[0], x[1]) in (('A', st), ('D', st)))
        n = sum(x[2] for x in seq[idx + 1:])
        e(f"s_waitcnt vmcnt({n})")
        e("s_barrier")
        for par in range(2):
            e(f"v_add_u32 {vr(BC+par)}, {(st%RING)*20480}, {vr(BB+par)}")
        side = do('A', st + 2) + do('D', st + RING - 1)
        rs = AS + (st % 3) * 24
        groups = []
        for k in range(2):
            for nt in range(10):
                imm = 10240 * k + 64 * (nt >> 1)
                reads = [(0, 2, "ds_read_b64_tr_b16 {dst}, " + f"{vr(BC+(nt&1))} offset:{imm}"),
                         (2, 2, "ds_read_b64_tr_b16 {dst}, " + f"{vr(BC+(nt&1))} offset:{imm+5120}")]
                mf = []
                for qt in range(3):
                    a = ACC + (qt * 10 + nt) * 4
                    mf.append(lambda b, a=a, o=rs + (k * 3 + qt) * 4:
                              f"v_mfma_f32_16x16x32_bf16 {vr(a,4)}, {vr(b,4)}, {vr(o,4)}, {vr(a,4)}")
                groups.append((reads, mf))
        ms = mfma_stream(groups, BUFS, 4)
        merge(e, ms, side, 0, 40)
    e("s_nop 7")
    for qt in range(3):
        for nt in range(10):
            e(f"s_mov_b32 {sr(s_t1)}, {qt*16*2560 + nt*64}")
            e(f"buffer_store_dwordx4 {vr(ACC+(qt*10+nt)*4,4)}, {vr(VOP)}, {sr(sP,4)}, {sr(s_t1)} offen")
    e("s_waitcnt vmcnt(0)")
    e.label("L_k2_end")
    e("s_endpgm")


def desc2(name, nfv, acc, sgpr=96):
    return f""".amdhsa_kernel {name}
  .amdhsa_next_free_vgpr {nfv}
  .amdhsa_next_free_sgpr {sgpr}
  .amdhsa_accum_offset {acc}
  .amdhsa_group_segment_fixed_size 0
  .amdhsa_kernarg_size 104
  .amdhsa_user_sgpr_count 2
  .amdhsa_user_sgpr_kernarg_segment_ptr 1
  .amdhsa_system_sgpr_workgroup_id_x 1
.end_amdhsa_kernel
"""


def main():
    e = Emitter()
    out = HEADER
    out += "; @launch kernel=k1_kernel grid=(512,1,1) block=(256,1,1) lds=147456\n"
    out += "; @launch kernel=k2_kernel grid=(256,1,1) block=(256,1,1) lds=143360\n"
    out += "; @launch kernel=k3_kernel grid=(960,1,1) block=(256,1,1) lds=0\n"
    out += '.amdgcn_target "amdgcn-amd-amdhsa--gfx950"\n.text\n'
    gen_k1(e)
    gen_k2(e)
    gen_k3(e)
    out += e.text()
    out += '.section .rodata,"a"\n.p2align 6\n'
    out += desc2("k1_kernel", 400, 256)
    out += ".p2align 6\n" + desc2("k2_kernel", 240, 240)
    out += ".p2align 6\n" + desc("k3_kernel", 48)
    path = sys.argv[1] if len(sys.argv) > 1 else f"cdna_kernels/{NAME}.s"
    open(path, "w").write(out)


if __name__ == "__main__":
    main()
```

```python
import math
import struct
import sys
import os
EXP = os.environ.get("EXP", "")

from gen import HEADER, NAME, WS_P_OFF, Emitter, vr, sr, gen_k3, desc


def ar(a, n=1):
    return f"a{a}" if n == 1 else f"a[{a}:{a+n-1}]"


def f32bits(x):
    return struct.unpack("<I", struct.pack("<f", x))[0]


def mfma_stream(groups, bufs, lookahead, primed=False, next_groups=None, addr_update=None, pre_out=0):
    out = []
    nb = len(bufs)
    assert lookahead < nb
    allg = list(groups) + (list(next_groups[:lookahead]) if next_groups else [])
    if next_groups:
        assert len(groups) % nb == 0
    issued = 0
    last = {}

    def issue(o, emit=True):
        nonlocal issued
        b = bufs[o % nb]
        if o == len(groups) and emit and addr_update:
            for t in addr_update:
                out.append(('i', t))
                if t.startswith("ds_read"):
                    issued += 1
        for (roff, rn, fmt) in allg[o][0]:
            if emit:
                out.append(('i', fmt.format(dst=vr(b + roff, rn))))
            issued += 1
        last[o] = issued
    nxt = 0
    while nxt < min(lookahead, len(allg)):
        issue(nxt, emit=not primed)
        nxt += 1
    for o, (reads, mf) in enumerate(groups):
        if nxt < len(allg):
            issue(nxt)
            nxt += 1
        n = issued - last[o]
        assert n <= 15, n
        out.append(('i', f"s_waitcnt lgkmcnt({n})"))
        for fn in mf:
            out.append(('m', fn(bufs[o % nb])))
    return out


def merge(e, ms, side, start=0, end=None):
    nm = sum(1 for k, _ in ms if k == 'm')
    if end is None:
        end = nm
    span = max(1, end - start)
    ns = len(side)
    mi = 0
    si = 0
    for k, t in ms:
        e(t)
        if k == 'm':
            if mi >= start:
                tgt = min(ns, ((mi - start + 1) * ns + span - 1) // span)
                while si < tgt or (si < ns and side[si].endswith(":")):
                    s = side[si]
                    if s.endswith(":"):
                        e.label(s[:-1])
                    else:
                        e(s)
                    si += 1
            mi += 1
    while si < ns:
        s = side[si]
        if s.endswith(":"):
            e.label(s[:-1])
        else:
            e(s)
        si += 1


def gen_k1(e):
    QF = 0
    SB = 72
    PB = 120
    BUFS = [144 + 4 * i for i in range(6)]
    KAB, VAB, KAC, VAC = 176, 178, 182, 184
    WAB, XAB = 188, 192
    VOKV, VOW, VOX = 193, 196, 199
    MC, MTHR, LS, AL, MR = 202, 205, 208, 211, 214
    T = 217
    VOUT = 229

    sX, sW, sK, sV, sO = 40, 44, 48, 52, 56
    s_n, s_cur, s_iss, s_xoff, s_woff, s_koff, s_voff, s_wlds, s_t0, s_t1, s_c, s_thr, s_flag = range(60, 73)
    s_b, s_h, s_blk, s_w = 73, 74, 75, 76
    sF = 80

    c2 = (192 ** -0.5) * math.log2(math.e)
    stamp_n = [0]

    def stamp():
        if "stamp" in EXP:
            e(f"s_memtime s[{86+2*stamp_n[0]}:{87+2*stamp_n[0]}]")
            e("s_waitcnt lgkmcnt(0)")
            stamp_n[0] += 1

    e.raw(".globl k1_kernel")
    e.raw(".p2align 8")
    e.raw(".type k1_kernel,@function")
    e.label("k1_kernel")
    e("s_cmp_ge_u32 s2, 512")
    e("s_cbranch_scc1 L_k1_end")
    stamp()
    e("s_load_dwordx16 s[16:31], s[0:1], 0")
    e("s_load_dwordx4 s[32:35], s[0:1], 64")
    e("s_load_dwordx2 s[36:37], s[0:1], 96")
    e("s_and_b32 s3, s2, 7")
    e("s_lshr_b32 s4, s2, 3")
    e(f"s_and_b32 {sr(s_b)}, s4, 7")
    e("s_lshr_b32 s4, s4, 3")
    e("s_lshl_b32 s3, s3, 3")
    e("s_add_u32 s3, s3, s4")
    e(f"s_lshr_b32 {sr(s_blk)}, s3, 5")
    e(f"s_and_b32 {sr(s_h)}, s3, 31")
    e(f"v_lshrrev_b32 {vr(T)}, 6, v0")
    e("s_nop 0")
    e(f"v_readfirstlane_b32 {sr(s_w)}, {vr(T)}")
    e("s_waitcnt lgkmcnt(0)")
    e(f"s_cmp_eq_u32 {sr(s_blk)}, 0")
    for i, (a, b) in enumerate(((16, 26), (17, 27), (18, 28), (19, 29), (20, 30), (21, 31), (22, 32), (23, 33))):
        e(f"s_cselect_b32 s{4+i}, s{a}, s{b}")
    e(f"s_mul_i32 s3, {sr(s_b)}, 245760")
    e(f"s_add_u32 {sr(sX)}, s4, s3")
    e(f"s_addc_u32 {sr(sX+1)}, s5, 0")
    e(f"s_mov_b32 {sr(sX+2)}, 245760")
    e(f"s_mov_b32 {sr(sX+3)}, 0x00020000")
    e(f"s_mul_i32 s3, {sr(s_h)}, 384")
    e(f"s_add_u32 {sr(sW)}, s10, s3")
    e(f"s_addc_u32 {sr(sW+1)}, s11, 0")
    e(f"s_sub_u32 {sr(sW+2)}, 7864320, s3")
    e(f"s_mov_b32 {sr(sW+3)}, 0x00020000")
    e(f"s_lshl_b32 s3, {sr(s_b)}, 5")
    e(f"s_add_u32 s3, s3, {sr(s_h)}")
    e("s_mul_i32 s3, s3, 196608")
    e(f"s_add_u32 {sr(sK)}, s6, s3")
    e(f"s_addc_u32 {sr(sK+1)}, s7, 0")
    e(f"s_mov_b32 {sr(sK+2)}, 196608")
    e(f"s_mov_b32 {sr(sK+3)}, 0x00020000")
    e(f"s_add_u32 {sr(sV)}, s8, s3")
    e(f"s_addc_u32 {sr(sV+1)}, s9, 0")
    e(f"s_mov_b32 {sr(sV+2)}, 196608")
    e(f"s_mov_b32 {sr(sV+3)}, 0x00020000")
    e(f"s_lshl_b32 s3, {sr(s_blk)}, 3")
    e(f"s_add_u32 s3, s3, {sr(s_b)}")
    e("s_mul_i32 s3, s3, 2359296")
    e(f"s_add_u32 {sr(sO)}, s36, s3")
    e(f"s_addc_u32 {sr(sO+1)}, s37, 0")
    e(f"s_mov_b32 {sr(sO+2)}, 2359296")
    e(f"s_mov_b32 {sr(sO+3)}, 0x00020000")
    e(f"s_mul_i32 {sr(s_wlds)}, {sr(s_w)}, 3072")

    LANE, G, L15, R, C = 1, 2, 3, 4, 5
    t0, t1, t2, t3, t4 = T, T + 1, T + 2, T + 3, T + 4
    e(f"v_and_b32 {vr(LANE)}, 63, v0")
    e(f"v_lshrrev_b32 {vr(G)}, 4, {vr(LANE)}")
    e(f"v_and_b32 {vr(L15)}, 15, {vr(LANE)}")
    e(f"v_bfe_u32 {vr(R)}, {vr(LANE)}, 2, 2")
    e(f"v_and_b32 {vr(C)}, 3, {vr(LANE)}")
    e("s_movk_i32 s3, 2731")
    e(f"s_lshl_b32 s4, {sr(s_w)}, 3")
    for i in range(3):
        e(f"v_add_u32 {vr(t0)}, {64*i}, {vr(LANE)}")
        e(f"v_mul_lo_u32 {vr(t1)}, {vr(t0)}, s3")
        e(f"v_lshrrev_b32 {vr(t1)}, 16, {vr(t1)}")
        e(f"v_mul_u32_u24 {vr(t2)}, 24, {vr(t1)}")
        e(f"v_sub_u32 {vr(t0)}, {vr(t0)}, {vr(t2)}")
        e(f"v_add_u32 {vr(t1)}, s4, {vr(t1)}")
        e(f"v_and_b32 {vr(t2)}, 6, {vr(t1)}")
        e(f"v_xor_b32 {vr(t2)}, {vr(t0)}, {vr(t2)}")
        e(f"v_lshlrev_b32 {vr(t2)}, 4, {vr(t2)}")
        e(f"v_mul_u32_u24 {vr(t3)}, 384, {vr(t1)}")
        e(f"v_add_u32 {vr(VOKV+i)}, {vr(t2)}, {vr(t3)}")
        e(f"v_and_b32 {vr(t2)}, 2, {vr(t1)}")
        e(f"v_bfe_u32 {vr(t3)}, {vr(t1)}, 3, 1")
        e(f"v_lshlrev_b32 {vr(t3)}, 2, {vr(t3)}")
        e(f"v_or_b32 {vr(t2)}, {vr(t2)}, {vr(t3)}")
        e(f"v_xor_b32 {vr(t2)}, {vr(t0)}, {vr(t2)}")
        e(f"v_lshlrev_b32 {vr(t2)}, 4, {vr(t2)}")
        e(f"v_mul_u32_u24 {vr(t3)}, 12288, {vr(t1)}")
        e(f"v_add_u32 {vr(VOW+i)}, {vr(t2)}, {vr(t3)}")
    e(f"v_lshrrev_b32 {vr(t0)}, 2, {vr(LANE)}")
    e(f"v_lshrrev_b32 {vr(t1)}, 1, {vr(t0)}")
    e(f"v_and_b32 {vr(t1)}, 2, {vr(t1)}")
    e(f"v_xor_b32 {vr(t1)}, {vr(C)}, {vr(t1)}")
    e(f"v_lshlrev_b32 {vr(t1)}, 4, {vr(t1)}")
    e(f"v_mul_u32_u24 {vr(t0)}, 1280, {vr(t0)}")
    e(f"s_mul_i32 s4, {sr(s_w)}, {48*1280}")
    e(f"v_add3_u32 {vr(VOX)}, {vr(t0)}, {vr(t1)}, s4")
    e(f"v_add_u32 {vr(VOX+1)}, {16*1280}, {vr(VOX)}")
    e(f"v_add_u32 {vr(VOX+2)}, {32*1280}, {vr(VOX)}")
    e(f"v_and_b32 {vr(t2)}, 6, {vr(L15)}")
    e(f"v_mul_u32_u24 {vr(t3)}, 384, {vr(L15)}")
    for tp in range(2):
        e(f"v_add_u32 {vr(t0)}, {4*tp}, {vr(G)}")
        e(f"v_xor_b32 {vr(t0)}, {vr(t0)}, {vr(t2)}")
        e(f"v_lshlrev_b32 {vr(t0)}, 4, {vr(t0)}")
        e(f"v_add3_u32 {vr(KAB+tp)}, {vr(t0)}, {vr(t3)}, 0")
    e(f"v_lshlrev_b32 {vr(t4)}, 2, {vr(G)}")
    e(f"v_add_u32 {vr(t4)}, {vr(t4)}, {vr(R)}")
    e(f"v_and_b32 {vr(t2)}, 6, {vr(t4)}")
    e(f"v_mul_u32_u24 {vr(t3)}, 384, {vr(t4)}")
    e(f"v_and_b32 {vr(t1)}, 1, {vr(C)}")
    e(f"v_lshlrev_b32 {vr(t1)}, 3, {vr(t1)}")
    e(f"v_add_u32 {vr(t3)}, {vr(t3)}, {vr(t1)}")
    for d4 in range(4):
        e(f"v_lshrrev_b32 {vr(t0)}, 1, {vr(C)}")
        e(f"v_add_u32 {vr(t0)}, {2*d4}, {vr(t0)}")
        e(f"v_xor_b32 {vr(t0)}, {vr(t0)}, {vr(t2)}")
        e(f"v_lshlrev_b32 {vr(t0)}, 4, {vr(t0)}")
        e(f"v_add_u32 {vr(VAB+d4)}, {vr(t0)}, {vr(t3)}")
    e(f"v_lshlrev_b32 {vr(t4)}, 3, {vr(G)}")
    e(f"v_add_u32 {vr(t4)}, {vr(t4)}, {vr(R)}")
    e(f"v_and_b32 {vr(t2)}, 2, {vr(R)}")
    e(f"v_and_b32 {vr(t0)}, 1, {vr(G)}")
    e(f"v_lshlrev_b32 {vr(t0)}, 2, {vr(t0)}")
    e(f"v_or_b32 {vr(t2)}, {vr(t2)}, {vr(t0)}")
    e(f"v_mul_u32_u24 {vr(t3)}, 384, {vr(t4)}")
    e(f"v_add_u32 {vr(t3)}, {vr(t3)}, {vr(t1)}")
    for d4 in range(4):
        e(f"v_lshrrev_b32 {vr(t0)}, 1, {vr(C)}")
        e(f"v_add_u32 {vr(t0)}, {2*d4}, {vr(t0)}")
        e(f"v_xor_b32 {vr(t0)}, {vr(t0)}, {vr(t2)}")
        e(f"v_lshlrev_b32 {vr(t0)}, 4, {vr(t0)}")
        e(f"v_add3_u32 {vr(WAB+d4)}, {vr(t0)}, {vr(t3)}, 0")
    e(f"v_lshrrev_b32 {vr(t0)}, 1, {vr(L15)}")
    e(f"v_and_b32 {vr(t0)}, 2, {vr(t0)}")
    e(f"v_xor_b32 {vr(t0)}, {vr(G)}, {vr(t0)}")
    e(f"v_lshlrev_b32 {vr(t0)}, 4, {vr(t0)}")
    e(f"v_lshlrev_b32 {vr(t1)}, 6, {vr(L15)}")
    e(f"s_mul_i32 s4, {sr(s_w)}, {48*64}")
    e(f"v_add3_u32 {vr(XAB)}, {vr(t0)}, {vr(t1)}, s4")
    e(f"v_lshlrev_b32 {vr(VOUT)}, 4, {vr(LANE)}")
    e(f"s_mul_i32 s3, {sr(s_w)}, {3*192*1024}")
    e(f"s_mul_i32 s4, {sr(s_h)}, 6144")
    e("s_add_u32 s3, s3, s4")
    e(f"v_add_u32 {vr(VOUT)}, s3, {vr(VOUT)}")

    s_mb = 79

    def dma(srd, vo_list, soff_s, unit_add):
        ins = []
        for i in range(3):
            ins.append(f"s_add_u32 m0, {sr(s_mb)}, {unit_add + 1024*i}")
            ins.append("s_nop 0")
            if "nodma" not in EXP:
                ins.append(f"buffer_load_dwordx4 {vr(vo_list[i])}, {sr(srd,4)}, {sr(soff_s)} offen lds")
        return ins

    def adv_iss():
        return [f"s_add_u32 {sr(s_mb)}, {sr(s_mb)}, 24576",
                f"s_cmp_ge_u32 {sr(s_mb)}, 147456",
                f"s_cselect_b32 {sr(s_mb)}, {sr(s_wlds)}, {sr(s_mb)}"]

    kvo = [VOKV, VOKV + 1, VOKV + 2]

    def issue_xw():
        ins = dma(sX, [VOX, VOX + 1, VOX + 2], s_xoff, 0) + dma(sW, [VOW, VOW + 1, VOW + 2], s_woff, 12288)
        ins += [f"s_add_u32 {sr(s_xoff)}, {sr(s_xoff)}, 64", f"s_add_u32 {sr(s_woff)}, {sr(s_woff)}, {32*12288}"]
        return ins + adv_iss()

    def issue_kk():
        ins = dma(sK, kvo, s_koff, 0) + [f"s_add_u32 {sr(s_koff)}, {sr(s_koff)}, 12288"]
        ins += dma(sK, kvo, s_koff, 12288) + [f"s_add_u32 {sr(s_koff)}, {sr(s_koff)}, 12288"]
        return ins + adv_iss()

    def issue_vk():
        ins = dma(sV, kvo, s_voff, 0) + dma(sK, kvo, s_koff, 12288)
        ins += [f"s_add_u32 {sr(s_voff)}, {sr(s_voff)}, 12288", f"s_add_u32 {sr(s_koff)}, {sr(s_koff)}, 12288"]
        return ins + adv_iss()

    def adv_cur():
        e(f"s_add_u32 {sr(s_cur)}, {sr(s_cur)}, 24576")
        e(f"s_cmp_eq_u32 {sr(s_cur)}, 147456")
        e(f"s_cselect_b32 {sr(s_cur)}, 0, {sr(s_cur)}")

    for s in (s_xoff, s_woff, s_koff, s_voff, s_cur, s_iss, s_n, s_flag):
        e(f"s_mov_b32 {sr(s)}, 0")
    e(f"s_mov_b32 {sr(s_mb)}, {sr(s_wlds)}")
    e(f"s_mov_b32 {sr(s_c)}, 0x{f32bits(c2):08x}")
    e(f"s_mov_b32 {sr(s_thr)}, 0x{f32bits(8.0/c2):08x}")
    for _ in range(5):
        for ins in issue_xw():
            e(ins)
    for i in range(144):
        e(f"v_accvgpr_write_b32 {ar(i)}, 0")

    XFS = [SB, SB + 12]
    s_nxt = 77
    LA = 4

    def calc_nxt():
        e(f"s_add_u32 {sr(s_nxt)}, {sr(s_cur)}, 24576")
        e(f"s_cmp_eq_u32 {sr(s_nxt)}, 147456")
        e(f"s_cselect_b32 {sr(s_nxt)}, 0, {sr(s_nxt)}")

    def q_groups(par):
        groups = []
        for dt in range(12):
            imm = 128 * (dt >> 2)
            reads = [(0, 2, "ds_read_b64_tr_b16 {dst}, " + f"{vr(VAC+(dt&3))} offset:{imm}"),
                     (2, 2, "ds_read_b64_tr_b16 {dst}, " + f"{vr(VAC+(dt&3))} offset:{imm+1536}")]
            mf = []
            for qt in range(3):
                a = (dt * 3 + qt) * 4
                mf.append(lambda b, a=a, qt=qt: f"v_mfma_f32_16x16x32_bf16 {ar(a,4)}, {vr(b,4)}, {vr(XFS[par]+4*qt,4)}, {ar(a,4)}")
            groups.append((reads, mf))
        return groups

    def q_addr(sbase, par):
        ins = [f"v_add_u32 {vr(KAC)}, {sr(sbase)}, {vr(XAB)}",
               f"s_add_u32 s78, {sr(sbase)}, 12288"]
        for i in range(4):
            ins.append(f"v_add_u32 {vr(VAC+i)}, s78, {vr(WAB+i)}")
        for qt in range(3):
            ins.append(f"ds_read_b128 {vr(XFS[par]+4*qt,4)}, {vr(KAC)} offset:{1024*qt}")
        return ins

    def q_body(par, issue, first=False, last=False):
        e("s_waitcnt vmcnt(18)")
        e("s_barrier")
        calc_nxt()
        if first:
            for ins in q_addr(s_cur, par):
                e(ins)
        ms = mfma_stream(q_groups(par), BUFS, LA, primed=not first,
                         next_groups=None if last else q_groups(1 - par),
                         addr_update=None if last else q_addr(s_nxt, 1 - par))
        merge(e, ms, issue, 0, 24)
        e(f"s_mov_b32 {sr(s_cur)}, {sr(s_nxt)}")

    stamp()
    q_body(0, issue_xw(), first=True)
    q_body(1, issue_xw())
    e.label("L_k1_q1")
    q_body(0, issue_xw())
    q_body(1, issue_xw())
    e(f"s_add_u32 {sr(s_n)}, {sr(s_n)}, 1")
    e(f"s_cmp_lt_u32 {sr(s_n)}, 6")
    e("s_cbranch_scc1 L_k1_q1")
    q_body(0, issue_xw())
    q_body(1, issue_kk())
    q_body(0, issue_vk())
    q_body(1, issue_vk())
    q_body(0, issue_vk())
    q_body(1, issue_vk(), last=True)

    stamp()
    e("s_nop 7")
    for Gd in range(6):
        for qt in range(3):
            qa = QF + (Gd * 3 + qt) * 4
            for half in range(2):
                a = ((2 * Gd + half) * 3 + qt) * 4
                for r in range(4):
                    e(f"v_accvgpr_read_b32 {vr(T+4*half+r)}, {ar(a+r)}")
            e(f"v_cvt_pk_bf16_f32 {vr(qa)}, {vr(T)}, {vr(T+1)}")
            e(f"v_cvt_pk_bf16_f32 {vr(qa+1)}, {vr(T+2)}, {vr(T+3)}")
            e(f"v_cvt_pk_bf16_f32 {vr(qa+2)}, {vr(T+4)}, {vr(T+5)}")
            e(f"v_cvt_pk_bf16_f32 {vr(qa+3)}, {vr(T+6)}, {vr(T+7)}")
            e("s_nop 1")
            e(f"v_permlane32_swap_b32 {vr(qa)}, {vr(qa+2)}")
            e(f"v_permlane32_swap_b32 {vr(qa+1)}, {vr(qa+3)}")
            e("s_nop 1")
            e(f"v_permlane16_swap_b32 {vr(qa)}, {vr(qa+2)}")
            e(f"v_permlane16_swap_b32 {vr(qa+1)}, {vr(qa+3)}")
    for i in range(144):
        e(f"v_accvgpr_write_b32 {ar(i)}, 0")
    for qt in range(3):
        e(f"v_mov_b32 {vr(MR+qt)}, 0xff800000")
        e(f"v_mov_b32 {vr(MTHR+qt)}, 0xff800000")
        e(f"v_mov_b32 {vr(MC+qt)}, 0")
        e(f"v_mov_b32 {vr(LS+qt)}, 0")
        e(f"v_mov_b32 {vr(AL+qt)}, 1.0")

    def qk_groups(sbuf, kaddr, koff):
        groups = []
        for kt in range(2):
            for t in range(6):
                imm = 128 * (t >> 1) + 6144 * kt + koff
                reads = [(0, 4, "ds_read_b128 {dst}, " + f"{vr(kaddr+(t&1))} offset:{imm}")]
                mf = []
                for qt in range(3):
                    d = SB + 24 * sbuf + (kt * 3 + qt) * 4
                    c = "0" if t == 0 else vr(d, 4)
                    mf.append(lambda b, d=d, c=c, t=t, qt=qt:
                              f"v_mfma_f32_16x16x32_bf16 {vr(d,4)}, {vr(b,4)}, {vr(QF+(t*3+qt)*4,4)}, {c}")
                groups.append((reads, mf))
        return groups

    def pv_groups(pbuf):
        groups = []
        for dt in range(12):
            imm = 128 * (dt >> 2)
            reads = [(0, 2, "ds_read_b64_tr_b16 {dst}, " + f"{vr(VAC+(dt&3))} offset:{imm}"),
                     (2, 2, "ds_read_b64_tr_b16 {dst}, " + f"{vr(VAC+(dt&3))} offset:{imm+6144}")]
            mf = []
            for qt in range(3):
                a = (dt * 3 + qt) * 4
                p = PB + 12 * pbuf + 4 * qt
                mf.append(lambda b, a=a, p=p: f"v_mfma_f32_16x16x32_bf16 {ar(a,4)}, {vr(b,4)}, {vr(p,4)}, {ar(a,4)}")
            groups.append((reads, mf))
        return groups

    slow_blocks = []

    def sm_list(buf):
        lab = e.newlabel("k1_sm")
        ins = []
        MX = T

        def sreg(qt, i):
            return SB + 24 * buf + ((i >> 2) * 3 + qt) * 4 + (i & 3)
        for qt in range(3):
            ins.append(f"v_max3_f32 {vr(MX+qt)}, {vr(sreg(qt,0))}, {vr(sreg(qt,1))}, {vr(sreg(qt,2))}")
            ins.append(f"v_max3_f32 {vr(MX+qt)}, {vr(MX+qt)}, {vr(sreg(qt,3))}, {vr(sreg(qt,4))}")
            ins.append(f"v_max3_f32 {vr(MX+qt)}, {vr(MX+qt)}, {vr(sreg(qt,5))}, {vr(sreg(qt,6))}")
            ins.append(f"v_max_f32 {vr(MX+qt)}, {vr(MX+qt)}, {vr(sreg(qt,7))}")
        for qt in range(3):
            ins.append(f"v_cmp_gt_f32 {sr(sF+2*qt,2)}, {vr(MX+qt)}, {vr(MTHR+qt)}")
        ins.append(f"s_or_b64 {sr(sF,2)}, {sr(sF,2)}, {sr(sF+2,2)}")
        ins.append(f"s_or_b64 {sr(sF,2)}, {sr(sF,2)}, {sr(sF+4,2)}")
        ins.append(f"s_cbranch_scc1 {lab}_slow")
        ins.append(f"{lab}_ret:")
        for qt in range(3):
            for i in range(8):
                ins.append(f"v_fma_f32 {vr(sreg(qt,i))}, {vr(sreg(qt,i))}, {sr(s_c)}, -{vr(MC+qt)}")
        for qt in range(3):
            for i in range(8):
                ins.append(f"v_exp_f32 {vr(sreg(qt,i))}, {vr(sreg(qt,i))}")
        for qt in range(3):
            ins.append(f"v_add_f32 {vr(MX+3+qt)}, {vr(sreg(qt,0))}, {vr(sreg(qt,1))}")
        for i in range(2, 8):
            for qt in range(3):
                ins.append(f"v_add_f32 {vr(MX+3+qt)}, {vr(MX+3+qt)}, {vr(sreg(qt,i))}")
        for qt in range(3):
            for i in range(4):
                ins.append(f"v_cvt_pk_bf16_f32 {vr(PB+12*buf+4*qt+i)}, {vr(sreg(qt,2*i))}, {vr(sreg(qt,2*i+1))}")
        for qt in range(3):
            ins.append(f"v_add_f32 {vr(LS+qt)}, {vr(LS+qt)}, {vr(MX+3+qt)}")
        sb = [f"{lab}_slow:"]
        tt = T + 6
        for qt in range(3):
            sb.append(f"v_mov_b32 {vr(tt)}, {vr(MX+qt)}")
            sb.append("s_nop 1")
            sb.append(f"v_permlane32_swap_b32 {vr(MX+qt)}, {vr(tt)}")
            sb.append(f"v_max_f32 {vr(MX+qt)}, {vr(MX+qt)}, {vr(tt)}")
            sb.append(f"v_mov_b32 {vr(tt)}, {vr(MX+qt)}")
            sb.append("s_nop 1")
            sb.append(f"v_permlane16_swap_b32 {vr(MX+qt)}, {vr(tt)}")
            sb.append(f"v_max_f32 {vr(MX+qt)}, {vr(MX+qt)}, {vr(tt)}")
            sb.append(f"v_max_f32 {vr(MX+qt)}, {vr(MX+qt)}, {vr(MR+qt)}")
            sb.append(f"v_sub_f32 {vr(tt)}, {vr(MR+qt)}, {vr(MX+qt)}")
            sb.append(f"v_mul_f32 {vr(tt)}, {sr(s_c)}, {vr(tt)}")
            sb.append(f"v_exp_f32 {vr(AL+qt)}, {vr(tt)}")
            sb.append(f"v_mov_b32 {vr(MR+qt)}, {vr(MX+qt)}")
            sb.append(f"v_add_f32 {vr(MTHR+qt)}, {sr(s_thr)}, {vr(MX+qt)}")
            sb.append(f"v_mul_f32 {vr(MC+qt)}, {sr(s_c)}, {vr(MX+qt)}")
            sb.append(f"v_mul_f32 {vr(LS+qt)}, {vr(LS+qt)}, {vr(AL+qt)}")
        sb.append(f"s_mov_b32 {sr(s_flag)}, 1")
        sb.append(f"s_branch {lab}_ret")
        slow_blocks.append(sb)
        return ins

    def rescale_check():
        lab = e.newlabel("k1_rs")
        e(f"s_cmp_eq_u32 {sr(s_flag)}, 0")
        e(f"s_cbranch_scc1 {lab}_skip")
        e("s_nop 7")
        for base in range(0, 144, 8):
            for i in range(8):
                e(f"v_accvgpr_read_b32 {vr(T+i)}, {ar(base+i)}")
            for i in range(8):
                qt = ((base + i) // 4) % 3
                e(f"v_mul_f32 {vr(T+i)}, {vr(T+i)}, {vr(AL+qt)}")
            for i in range(8):
                e(f"v_accvgpr_write_b32 {ar(base+i)}, {vr(T+i)}")
        e(f"s_mov_b32 {sr(s_flag)}, 0")
        e("s_nop 1")
        e.label(f"{lab}_skip")

    def v_addr(sbase):
        return [f"v_add_u32 {vr(VAC+i)}, {sr(sbase)}, {vr(VAB+i)}" for i in range(4)]

    e("s_waitcnt vmcnt(18)")
    e("s_barrier")
    calc_nxt()
    for i in range(2):
        e(f"v_add_u32 {vr(KAC+i)}, {sr(s_cur)}, {vr(KAB+i)}")
    g0 = qk_groups(0, KAC, 0)
    g1 = qk_groups(1, KAC, 12288)
    ms = mfma_stream(g0 + g1, BUFS, LA, next_groups=pv_groups(0), addr_update=v_addr(s_nxt))
    nm0 = 36 + 7
    side0 = issue_vk()
    cnt = 0
    cut = None
    for idx, (k, t) in enumerate(ms):
        if k == 'm':
            cnt += 1
            if cnt == nm0:
                cut = idx + 1
                break
    merge(e, ms[:cut], side0, 0, 20)
    merge(e, ms[cut:], sm_list(0))
    e(f"s_mov_b32 {sr(s_flag)}, 0")
    e(f"s_mov_b32 {sr(s_cur)}, {sr(s_nxt)}")

    def a_body(j_par, do_qk, do_sm, last=False):
        e("s_waitcnt vmcnt(18)")
        e("s_barrier")
        calc_nxt()
        if do_qk:
            e(f"s_add_u32 {sr(s_t0)}, {sr(s_cur)}, 12288")
            for i in range(2):
                e(f"v_add_u32 {vr(KAC+i)}, {sr(s_t0)}, {vr(KAB+i)}")
        groups = pv_groups(j_par)
        if do_qk:
            groups += qk_groups(j_par, KAC, 0)
        ms = mfma_stream(groups, BUFS, LA, primed=True,
                         next_groups=None if last else pv_groups(1 - j_par),
                         addr_update=None if last else v_addr(s_nxt))
        side = issue_vk()
        if do_sm and "nosm" not in EXP:
            side = side + sm_list(1 - j_par)
        merge(e, ms, side)
        if do_sm:
            if not do_qk:
                e("s_nop 7")
            rescale_check()
        e(f"s_mov_b32 {sr(s_cur)}, {sr(s_nxt)}")

    stamp()
    e(f"s_mov_b32 {sr(s_n)}, 0")
    e.label("L_k1_aloop")
    a_body(0, True, True)
    a_body(1, True, True)
    e(f"s_add_u32 {sr(s_n)}, {sr(s_n)}, 1")
    e(f"s_cmp_lt_u32 {sr(s_n)}, 7")
    e("s_cbranch_scc1 L_k1_aloop")
    a_body(0, False, True)
    a_body(1, False, False, last=True)

    stamp()
    tt = T + 8
    for qt in range(3):
        e(f"v_mov_b32 {vr(tt)}, {vr(LS+qt)}")
        e("s_nop 1")
        e(f"v_permlane32_swap_b32 {vr(LS+qt)}, {vr(tt)}")
        e(f"v_add_f32 {vr(LS+qt)}, {vr(LS+qt)}, {vr(tt)}")
        e(f"v_mov_b32 {vr(tt)}, {vr(LS+qt)}")
        e("s_nop 1")
        e(f"v_permlane16_swap_b32 {vr(LS+qt)}, {vr(tt)}")
        e(f"v_add_f32 {vr(LS+qt)}, {vr(LS+qt)}, {vr(tt)}")
        e(f"v_rcp_f32 {vr(LS+qt)}, {vr(LS+qt)}")
    e("s_nop 7")
    for qt in range(3):
        for Gd in range(6):
            qa = QF + (Gd * 3 + qt) * 4
            for half in range(2):
                a = ((2 * Gd + half) * 3 + qt) * 4
                for r in range(4):
                    e(f"v_accvgpr_read_b32 {vr(T+4*half+r)}, {ar(a+r)}")
            for i in range(8):
                e(f"v_mul_f32 {vr(T+i)}, {vr(T+i)}, {vr(LS+qt)}")
            for i in range(4):
                e(f"v_cvt_pk_bf16_f32 {vr(qa+i)}, {vr(T+2*i)}, {vr(T+2*i+1)}")
            e(f"s_mov_b32 s3, {qt*192*1024 + Gd*1024}")
            e(f"buffer_store_dwordx4 {vr(qa,4)}, {vr(VOUT)}, {sr(sO,4)}, s3 offen")
    e("s_waitcnt vmcnt(0)")
    stamp()
    if "stamp" in EXP:
        e("s_add_u32 s40, s36, 0xC800000")
        e("s_addc_u32 s41, s37, 0")
        e("s_mov_b32 s42, 0x100000")
        e("s_mov_b32 s43, 0x00020000")
        e("s_lshl_b32 s3, s2, 2")
        e(f"s_add_u32 s3, s3, {sr(s_w)}")
        e("s_lshl_b32 s3, s3, 6")
        e("v_mov_b32 v1, s3")
        for i in range(6):
            e(f"v_mov_b32 v2, s{86+2*i}")
            e(f"buffer_store_dword v2, v1, s[40:43], 0 offen offset:{4*i}")
        e("s_waitcnt vmcnt(0)")
    e.label("L_k1_end")
    e("s_endpgm")
    for sb in slow_blocks:
        for s in sb:
            if s.endswith(":"):
                e.label(s[:-1])
            else:
                e(s)


def gen_k2(e):
    ACC = 0
    NSET = 6
    AS = 8
    BUFS = [AS + 24 * NSET + 4 * i for i in range(8)]
    VO = BUFS[-1] + 4
    BB = VO + 5
    BC = BB + 2
    VOA = BC + 2
    VOP = VOA + 1
    T = VOP + 1
    sWO, sA, sP = 40, 44, 48
    s_blk, s_ks, s_b, s_nc, s_w, s_wl, s_t0, s_t1 = 60, 61, 62, 63, 64, 65, 66, 67
    RING = 7
    NST = 24

    e.raw(".globl k2_kernel")
    e.raw(".p2align 8")
    e.raw(".type k2_kernel,@function")
    e.label("k2_kernel")
    e("s_cmp_ge_u32 s2, 256")
    e("s_cbranch_scc1 L_k2_end")
    e("s_load_dwordx2 s[16:17], s[0:1], 32")
    e("s_load_dwordx2 s[18:19], s[0:1], 72")
    e("s_load_dwordx2 s[36:37], s[0:1], 96")
    e("s_and_b32 s3, s2, 7")
    e(f"s_lshr_b32 {sr(s_blk)}, s3, 2")
    e(f"s_and_b32 {sr(s_ks)}, s3, 3")
    e("s_lshr_b32 s4, s2, 3")
    e(f"s_lshr_b32 {sr(s_b)}, s4, 2")
    e(f"s_and_b32 {sr(s_nc)}, s4, 3")
    e(f"v_lshrrev_b32 {vr(T)}, 6, v0")
    e("s_nop 0")
    e(f"v_readfirstlane_b32 {sr(s_w)}, {vr(T)}")
    e("s_waitcnt lgkmcnt(0)")
    e(f"s_cmp_eq_u32 {sr(s_blk)}, 0")
    e("s_cselect_b32 s4, s16, s18")
    e("s_cselect_b32 s5, s17, s19")
    e(f"s_mul_i32 s3, {sr(s_ks)}, {1536*1280}")
    e(f"s_mul_i32 s6, {sr(s_nc)}, 320")
    e("s_add_u32 s3, s3, s6")
    e(f"s_add_u32 {sr(sWO)}, s4, s3")
    e(f"s_addc_u32 {sr(sWO+1)}, s5, 0")
    e(f"s_sub_u32 {sr(sWO+2)}, 7864320, s3")
    e(f"s_mov_b32 {sr(sWO+3)}, 0x00020000")
    e(f"s_lshl_b32 s3, {sr(s_blk)}, 3")
    e(f"s_add_u32 s3, s3, {sr(s_b)}")
    e("s_mul_i32 s3, s3, 2359296")
    e(f"s_add_u32 {sr(sA)}, s36, s3")
    e(f"s_addc_u32 {sr(sA+1)}, s37, 0")
    e(f"s_mov_b32 {sr(sA+2)}, 2359296")
    e(f"s_mov_b32 {sr(sA+3)}, 0x00020000")
    e(f"s_lshl_b32 s3, {sr(s_ks)}, 1")
    e(f"s_add_u32 s3, s3, {sr(s_blk)}")
    e("s_mul_i32 s3, s3, 3932160")
    e(f"s_mul_i32 s6, {sr(s_b)}, {192*2560}")
    e("s_add_u32 s3, s3, s6")
    e(f"s_add_u32 s3, s3, {WS_P_OFF}")
    e(f"s_add_u32 {sr(sP)}, s36, s3")
    e(f"s_addc_u32 {sr(sP+1)}, s37, 0")
    e(f"s_mov_b32 {sr(sP+2)}, {192*2560}")
    e(f"s_mov_b32 {sr(sP+3)}, 0x00020000")
    e(f"s_mul_i32 {sr(s_wl)}, {sr(s_w)}, 5120")

    LANE, G, L15, R, C = 1, 2, 3, 4, 5
    t0, t1, t2, t3 = T, T + 1, T + 2, T + 3
    e(f"v_and_b32 {vr(LANE)}, 63, v0")
    e(f"v_lshrrev_b32 {vr(G)}, 4, {vr(LANE)}")
    e(f"v_and_b32 {vr(L15)}, 15, {vr(LANE)}")
    e(f"v_bfe_u32 {vr(R)}, {vr(LANE)}, 2, 2")
    e(f"v_and_b32 {vr(C)}, 3, {vr(LANE)}")
    e("s_movk_i32 s3, 3277")
    e(f"s_mul_i32 s6, {sr(s_w)}, {16*1280}")
    for i in range(5):
        e(f"v_add_u32 {vr(t0)}, {64*i}, {vr(LANE)}")
        e(f"v_mul_lo_u32 {vr(t1)}, {vr(t0)}, s3")
        e(f"v_lshrrev_b32 {vr(t1)}, 16, {vr(t1)}")
        e(f"v_mul_u32_u24 {vr(t2)}, 20, {vr(t1)}")
        e(f"v_sub_u32 {vr(t0)}, {vr(t0)}, {vr(t2)}")
        e(f"v_lshrrev_b32 {vr(t2)}, 1, {vr(t1)}")
        e(f"v_and_b32 {vr(t2)}, 2, {vr(t2)}")
        e(f"v_xor_b32 {vr(t0)}, {vr(t0)}, {vr(t2)}")
        e(f"v_lshlrev_b32 {vr(t0)}, 4, {vr(t0)}")
        e(f"v_mul_u32_u24 {vr(t1)}, 1280, {vr(t1)}")
        e(f"v_add3_u32 {vr(VO+i)}, {vr(t0)}, {vr(t1)}, s6")
    e(f"v_lshlrev_b32 {vr(t0)}, 2, {vr(G)}")
    e(f"v_add_u32 {vr(t0)}, {vr(t0)}, {vr(R)}")
    e(f"v_mul_u32_u24 {vr(t0)}, 320, {vr(t0)}")
    e(f"v_and_b32 {vr(t1)}, 1, {vr(C)}")
    e(f"v_lshlrev_b32 {vr(t1)}, 3, {vr(t1)}")
    e(f"v_add_u32 {vr(t0)}, {vr(t0)}, {vr(t1)}")
    e(f"v_and_b32 {vr(t2)}, 1, {vr(G)}")
    e(f"v_lshlrev_b32 {vr(t2)}, 1, {vr(t2)}")
    for par in range(2):
        e(f"v_lshrrev_b32 {vr(t1)}, 1, {vr(C)}")
        e(f"v_add_u32 {vr(t1)}, {2*par}, {vr(t1)}")
        e(f"v_xor_b32 {vr(t1)}, {vr(t1)}, {vr(t2)}")
        e(f"v_lshlrev_b32 {vr(t1)}, 4, {vr(t1)}")
        e(f"v_add_u32 {vr(BB+par)}, {vr(t0)}, {vr(t1)}")
    e(f"s_mul_i32 s3, {sr(s_w)}, {3*192*1024}")
    e(f"s_mul_i32 s6, {sr(s_ks)}, {48*1024}")
    e("s_add_u32 s3, s3, s6")
    e(f"v_lshlrev_b32 {vr(VOA)}, 4, {vr(LANE)}")
    e(f"v_add_u32 {vr(VOA)}, s3, {vr(VOA)}")
    e(f"s_mul_i32 s3, {sr(s_w)}, {48*2560}")
    e(f"s_mul_i32 s6, {sr(s_nc)}, 640")
    e("s_add_u32 s3, s3, s6")
    e(f"v_mul_u32_u24 {vr(t0)}, 2560, {vr(L15)}")
    e(f"v_lshlrev_b32 {vr(t1)}, 4, {vr(G)}")
    e(f"v_add3_u32 {vr(VOP)}, {vr(t0)}, {vr(t1)}, s3")

    def issue_dma(st):
        ins = []
        base = (st % RING) * 20480
        for i in range(5):
            ins.append(f"s_add_u32 m0, {sr(s_wl)}, {base + 1024*i}")
            ins.append(f"s_mov_b32 {sr(s_t0)}, {st*64*1280}")
            ins.append(f"buffer_load_dwordx4 {vr(VO+i)}, {sr(sWO,4)}, {sr(s_t0)} offen lds")
        return ins

    def issue_a(st):
        ins = []
        rs = AS + (st % NSET) * 24
        for qt in range(3):
            ins.append(f"s_mov_b32 {sr(s_t1)}, {qt*192*1024 + st*2*1024}")
            for k in range(2):
                ins.append(f"buffer_load_dwordx4 {vr(rs+(k*3+qt)*4,4)}, {vr(VOA)}, {sr(sA,4)}, {sr(s_t1)} offen offset:{1024*k}")
        return ins

    for i in range(120):
        e(f"v_accvgpr_write_b32 {ar(ACC+i)}, 0")
    seq = []

    def do(kind, st):
        if st >= NST:
            return []
        seq.append((kind, st, 6 if kind == 'A' else 5))
        return issue_a(st) if kind == 'A' else issue_dma(st)
    pro = []
    for s_ in range(max(RING - 1, NSET - 1)):
        if s_ < RING - 1:
            pro += do('D', s_)
        if s_ < NSET - 1:
            pro += do('A', s_)
    for ins in pro:
        e(ins)
    for st in range(NST):
        idx = max(i for i, x in enumerate(seq) if (x[0], x[1]) in (('A', st), ('D', st)))
        n = sum(x[2] for x in seq[idx + 1:])
        e(f"s_waitcnt vmcnt({n})")
        e("s_barrier")
        for par in range(2):
            e(f"v_add_u32 {vr(BC+par)}, {(st%RING)*20480}, {vr(BB+par)}")
        side = do('A', st + NSET - 1) + do('D', st + RING - 1)
        rs = AS + (st % NSET) * 24
        groups = []
        for k in range(2):
            for nt in range(10):
                imm = 10240 * k + 64 * (nt >> 1)
                reads = [(0, 2, "ds_read_b64_tr_b16 {dst}, " + f"{vr(BC+(nt&1))} offset:{imm}"),
                         (2, 2, "ds_read_b64_tr_b16 {dst}, " + f"{vr(BC+(nt&1))} offset:{imm+5120}")]
                mf = []
                for qt in range(3):
                    a = ACC + (qt * 10 + nt) * 4
                    mf.append(lambda b, a=a, o=rs + (k * 3 + qt) * 4:
                              f"v_mfma_f32_16x16x32_bf16 {ar(a,4)}, {vr(b,4)}, {vr(o,4)}, {ar(a,4)}")
                groups.append((reads, mf))
        ms = mfma_stream(groups, BUFS, 4)
        merge(e, ms, side, 0, 40)
    e("s_nop 7")
    for qt in range(3):
        for nt in range(10):
            e(f"s_mov_b32 {sr(s_t1)}, {qt*16*2560 + nt*64}")
            e(f"buffer_store_dwordx4 {ar(ACC+(qt*10+nt)*4,4)}, {vr(VOP)}, {sr(sP,4)}, {sr(s_t1)} offen")
    e("s_waitcnt vmcnt(0)")
    e.label("L_k2_end")
    e("s_endpgm")


def desc2(name, nfv, acc, sgpr=96):
    return f""".amdhsa_kernel {name}
  .amdhsa_next_free_vgpr {nfv}
  .amdhsa_next_free_sgpr {sgpr}
  .amdhsa_accum_offset {acc}
  .amdhsa_group_segment_fixed_size 0
  .amdhsa_kernarg_size 104
  .amdhsa_user_sgpr_count 2
  .amdhsa_user_sgpr_kernarg_segment_ptr 1
  .amdhsa_system_sgpr_workgroup_id_x 1
.end_amdhsa_kernel
"""


def main():
    e = Emitter()
    out = HEADER
    out += "; @launch kernel=k1_kernel grid=(512,1,1) block=(256,1,1) lds=147456\n"
    out += "; @launch kernel=k2_kernel grid=(256,1,1) block=(256,1,1) lds=143360\n"
    out += "; @launch kernel=k3_kernel grid=(960,1,1) block=(256,1,1) lds=0\n"
    out += '.amdgcn_target "amdgcn-amd-amdhsa--gfx950"\n.text\n'
    gen_k1(e)
    gen_k2(e)
    gen_k3(e)
    out += e.text()
    out += '.section .rodata,"a"\n.p2align 6\n'
    out += desc2("k1_kernel", 400, 256, 100)
    out += ".p2align 6\n" + desc2("k2_kernel", 256+120, 256)
    out += ".p2align 6\n" + desc("k3_kernel", 48)
    path = sys.argv[1] if len(sys.argv) > 1 else f"cdna_kernels/{NAME}.s"
    open(path, "w").write(out)


if __name__ == "__main__":
    main()
```

```python
import math
import struct
import sys
import os
EXP = os.environ.get("EXP", "")

from gen import HEADER, NAME, WS_P_OFF, Emitter, vr, sr, desc


def ar(a, n=1):
    return f"a{a}" if n == 1 else f"a[{a}:{a+n-1}]"


def f32bits(x):
    return struct.unpack("<I", struct.pack("<f", x))[0]


def mfma_stream(groups, bufs, lookahead, primed=False, next_groups=None, addr_update=None, pre_out=0):
    out = []
    nb = len(bufs)
    assert lookahead < nb
    allg = list(groups) + (list(next_groups[:lookahead]) if next_groups else [])
    if next_groups:
        assert len(groups) % nb == 0
    issued = 0
    last = {}

    def issue(o, emit=True):
        nonlocal issued
        b = bufs[o % nb]
        if o == len(groups) and emit and addr_update:
            for t in addr_update:
                out.append(('i', t))
                if t.startswith("ds_read"):
                    issued += 1
        for (roff, rn, fmt) in allg[o][0]:
            if emit:
                out.append(('i', fmt.format(dst=vr(b + roff, rn))))
            issued += 1
        last[o] = issued
    nxt = 0
    while nxt < min(lookahead, len(allg)):
        issue(nxt, emit=not primed)
        nxt += 1
    for o, (reads, mf) in enumerate(groups):
        if nxt < len(allg):
            issue(nxt)
            nxt += 1
        n = issued - last[o]
        assert n <= 15, n
        out.append(('i', f"s_waitcnt lgkmcnt({n})"))
        for fn in mf:
            out.append(('m', fn(bufs[o % nb])))
    return out


def merge(e, ms, side, start=0, end=None):
    nm = sum(1 for k, _ in ms if k == 'm')
    if end is None:
        end = nm
    span = max(1, end - start)
    ns = len(side)
    mi = 0
    si = 0
    for k, t in ms:
        e(t)
        if k == 'm':
            if mi >= start:
                tgt = min(ns, ((mi - start + 1) * ns + span - 1) // span)
                while si < tgt or (si < ns and side[si].endswith(":")):
                    s = side[si]
                    if s.endswith(":"):
                        e.label(s[:-1])
                    else:
                        e(s)
                    si += 1
            mi += 1
    while si < ns:
        s = side[si]
        if s.endswith(":"):
            e.label(s[:-1])
        else:
            e(s)
        si += 1


def gen_k1(e):
    QF = 0
    SB = 72
    PB = 120
    BUFS = [144 + 4 * i for i in range(6)]
    KAB, VAB, KAC, VAC = 176, 178, 182, 184
    WAB, XAB = 188, 192
    VOKV, VOW, VOX = 193, 196, 199
    MC, MTHR, LS, AL, MR = 202, 205, 208, 211, 214
    T = 217
    VOUT = 229

    sX, sW, sK, sV, sO = 40, 44, 48, 52, 56
    s_n, s_cur, s_iss, s_xoff, s_woff, s_koff, s_voff, s_wlds, s_t0, s_t1, s_c, s_thr, s_flag = range(60, 73)
    s_b, s_h, s_blk, s_w = 73, 74, 75, 76
    sF = 80

    c2 = (192 ** -0.5) * math.log2(math.e)
    stamp_n = [0]

    def stamp():
        if "stamp" in EXP:
            e(f"s_memtime s[{86+2*stamp_n[0]}:{87+2*stamp_n[0]}]")
            e("s_waitcnt lgkmcnt(0)")
            stamp_n[0] += 1

    e.raw(".globl k1_kernel")
    e.raw(".p2align 8")
    e.raw(".type k1_kernel,@function")
    e.label("k1_kernel")
    e("s_cmp_ge_u32 s2, 512")
    e("s_cbranch_scc1 L_k1_end")
    stamp()
    e("s_load_dwordx16 s[16:31], s[0:1], 0")
    e("s_load_dwordx4 s[32:35], s[0:1], 64")
    e("s_load_dwordx2 s[36:37], s[0:1], 96")
    e("s_and_b32 s3, s2, 7")
    e("s_lshr_b32 s4, s2, 3")
    e(f"s_and_b32 {sr(s_b)}, s4, 7")
    e("s_lshr_b32 s4, s4, 3")
    e("s_lshl_b32 s3, s3, 3")
    e("s_add_u32 s3, s3, s4")
    e(f"s_lshr_b32 {sr(s_blk)}, s3, 5")
    e(f"s_and_b32 {sr(s_h)}, s3, 31")
    e(f"v_lshrrev_b32 {vr(T)}, 6, v0")
    e("s_nop 0")
    e(f"v_readfirstlane_b32 {sr(s_w)}, {vr(T)}")
    e("s_waitcnt lgkmcnt(0)")
    e(f"s_cmp_eq_u32 {sr(s_blk)}, 0")
    for i, (a, b) in enumerate(((16, 26), (17, 27), (18, 28), (19, 29), (20, 30), (21, 31), (22, 32), (23, 33))):
        e(f"s_cselect_b32 s{4+i}, s{a}, s{b}")
    e(f"s_mul_i32 s3, {sr(s_b)}, 245760")
    e(f"s_add_u32 {sr(sX)}, s4, s3")
    e(f"s_addc_u32 {sr(sX+1)}, s5, 0")
    e(f"s_mov_b32 {sr(sX+2)}, 245760")
    e(f"s_mov_b32 {sr(sX+3)}, 0x00020000")
    e(f"s_mul_i32 s3, {sr(s_h)}, 384")
    e(f"s_add_u32 {sr(sW)}, s10, s3")
    e(f"s_addc_u32 {sr(sW+1)}, s11, 0")
    e(f"s_sub_u32 {sr(sW+2)}, 7864320, s3")
    e(f"s_mov_b32 {sr(sW+3)}, 0x00020000")
    e(f"s_lshl_b32 s3, {sr(s_b)}, 5")
    e(f"s_add_u32 s3, s3, {sr(s_h)}")
    e("s_mul_i32 s3, s3, 196608")
    e(f"s_add_u32 {sr(sK)}, s6, s3")
    e(f"s_addc_u32 {sr(sK+1)}, s7, 0")
    e(f"s_mov_b32 {sr(sK+2)}, 196608")
    e(f"s_mov_b32 {sr(sK+3)}, 0x00020000")
    e(f"s_add_u32 {sr(sV)}, s8, s3")
    e(f"s_addc_u32 {sr(sV+1)}, s9, 0")
    e(f"s_mov_b32 {sr(sV+2)}, 196608")
    e(f"s_mov_b32 {sr(sV+3)}, 0x00020000")
    e(f"s_lshl_b32 s3, {sr(s_blk)}, 3")
    e(f"s_add_u32 s3, s3, {sr(s_b)}")
    e("s_mul_i32 s3, s3, 2359296")
    e(f"s_add_u32 {sr(sO)}, s36, s3")
    e(f"s_addc_u32 {sr(sO+1)}, s37, 0")
    e(f"s_mov_b32 {sr(sO+2)}, 2359296")
    e(f"s_mov_b32 {sr(sO+3)}, 0x00020000")
    e(f"s_mul_i32 {sr(s_wlds)}, {sr(s_w)}, 3072")

    LANE, G, L15, R, C = 1, 2, 3, 4, 5
    t0, t1, t2, t3, t4 = T, T + 1, T + 2, T + 3, T + 4
    e(f"v_and_b32 {vr(LANE)}, 63, v0")
    e(f"v_lshrrev_b32 {vr(G)}, 4, {vr(LANE)}")
    e(f"v_and_b32 {vr(L15)}, 15, {vr(LANE)}")
    e(f"v_bfe_u32 {vr(R)}, {vr(LANE)}, 2, 2")
    e(f"v_and_b32 {vr(C)}, 3, {vr(LANE)}")
    e("s_movk_i32 s3, 2731")
    e(f"s_lshl_b32 s4, {sr(s_w)}, 3")
    for i in range(3):
        e(f"v_add_u32 {vr(t0)}, {64*i}, {vr(LANE)}")
        e(f"v_mul_lo_u32 {vr(t1)}, {vr(t0)}, s3")
        e(f"v_lshrrev_b32 {vr(t1)}, 16, {vr(t1)}")
        e(f"v_mul_u32_u24 {vr(t2)}, 24, {vr(t1)}")
        e(f"v_sub_u32 {vr(t0)}, {vr(t0)}, {vr(t2)}")
        e(f"v_add_u32 {vr(t1)}, s4, {vr(t1)}")
        e(f"v_and_b32 {vr(t2)}, 6, {vr(t1)}")
        e(f"v_xor_b32 {vr(t2)}, {vr(t0)}, {vr(t2)}")
        e(f"v_lshlrev_b32 {vr(t2)}, 4, {vr(t2)}")
        e(f"v_mul_u32_u24 {vr(t3)}, 384, {vr(t1)}")
        e(f"v_add_u32 {vr(VOKV+i)}, {vr(t2)}, {vr(t3)}")
        e(f"v_and_b32 {vr(t2)}, 2, {vr(t1)}")
        e(f"v_bfe_u32 {vr(t3)}, {vr(t1)}, 3, 1")
        e(f"v_lshlrev_b32 {vr(t3)}, 2, {vr(t3)}")
        e(f"v_or_b32 {vr(t2)}, {vr(t2)}, {vr(t3)}")
        e(f"v_xor_b32 {vr(t2)}, {vr(t0)}, {vr(t2)}")
        e(f"v_lshlrev_b32 {vr(t2)}, 4, {vr(t2)}")
        e(f"v_mul_u32_u24 {vr(t3)}, 12288, {vr(t1)}")
        e(f"v_add_u32 {vr(VOW+i)}, {vr(t2)}, {vr(t3)}")
    e(f"v_lshrrev_b32 {vr(t0)}, 2, {vr(LANE)}")
    e(f"v_lshrrev_b32 {vr(t1)}, 1, {vr(t0)}")
    e(f"v_and_b32 {vr(t1)}, 2, {vr(t1)}")
    e(f"v_xor_b32 {vr(t1)}, {vr(C)}, {vr(t1)}")
    e(f"v_lshlrev_b32 {vr(t1)}, 4, {vr(t1)}")
    e(f"v_mul_u32_u24 {vr(t0)}, 1280, {vr(t0)}")
    e(f"s_mul_i32 s4, {sr(s_w)}, {48*1280}")
    e(f"v_add3_u32 {vr(VOX)}, {vr(t0)}, {vr(t1)}, s4")
    e(f"v_add_u32 {vr(VOX+1)}, {16*1280}, {vr(VOX)}")
    e(f"v_add_u32 {vr(VOX+2)}, {32*1280}, {vr(VOX)}")
    e(f"v_and_b32 {vr(t2)}, 6, {vr(L15)}")
    e(f"v_mul_u32_u24 {vr(t3)}, 384, {vr(L15)}")
    for tp in range(2):
        e(f"v_add_u32 {vr(t0)}, {4*tp}, {vr(G)}")
        e(f"v_xor_b32 {vr(t0)}, {vr(t0)}, {vr(t2)}")
        e(f"v_lshlrev_b32 {vr(t0)}, 4, {vr(t0)}")
        e(f"v_add3_u32 {vr(KAB+tp)}, {vr(t0)}, {vr(t3)}, 0")
    e(f"v_lshlrev_b32 {vr(t4)}, 2, {vr(G)}")
    e(f"v_add_u32 {vr(t4)}, {vr(t4)}, {vr(R)}")
    e(f"v_and_b32 {vr(t2)}, 6, {vr(t4)}")
    e(f"v_mul_u32_u24 {vr(t3)}, 384, {vr(t4)}")
    e(f"v_and_b32 {vr(t1)}, 1, {vr(C)}")
    e(f"v_lshlrev_b32 {vr(t1)}, 3, {vr(t1)}")
    e(f"v_add_u32 {vr(t3)}, {vr(t3)}, {vr(t1)}")
    for d4 in range(4):
        e(f"v_lshrrev_b32 {vr(t0)}, 1, {vr(C)}")
        e(f"v_add_u32 {vr(t0)}, {2*d4}, {vr(t0)}")
        e(f"v_xor_b32 {vr(t0)}, {vr(t0)}, {vr(t2)}")
        e(f"v_lshlrev_b32 {vr(t0)}, 4, {vr(t0)}")
        e(f"v_add_u32 {vr(VAB+d4)}, {vr(t0)}, {vr(t3)}")
    e(f"v_lshlrev_b32 {vr(t4)}, 3, {vr(G)}")
    e(f"v_add_u32 {vr(t4)}, {vr(t4)}, {vr(R)}")
    e(f"v_and_b32 {vr(t2)}, 2, {vr(R)}")
    e(f"v_and_b32 {vr(t0)}, 1, {vr(G)}")
    e(f"v_lshlrev_b32 {vr(t0)}, 2, {vr(t0)}")
    e(f"v_or_b32 {vr(t2)}, {vr(t2)}, {vr(t0)}")
    e(f"v_mul_u32_u24 {vr(t3)}, 384, {vr(t4)}")
    e(f"v_add_u32 {vr(t3)}, {vr(t3)}, {vr(t1)}")
    for d4 in range(4):
        e(f"v_lshrrev_b32 {vr(t0)}, 1, {vr(C)}")
        e(f"v_add_u32 {vr(t0)}, {2*d4}, {vr(t0)}")
        e(f"v_xor_b32 {vr(t0)}, {vr(t0)}, {vr(t2)}")
        e(f"v_lshlrev_b32 {vr(t0)}, 4, {vr(t0)}")
        e(f"v_add3_u32 {vr(WAB+d4)}, {vr(t0)}, {vr(t3)}, 0")
    e(f"v_lshrrev_b32 {vr(t0)}, 1, {vr(L15)}")
    e(f"v_and_b32 {vr(t0)}, 2, {vr(t0)}")
    e(f"v_xor_b32 {vr(t0)}, {vr(G)}, {vr(t0)}")
    e(f"v_lshlrev_b32 {vr(t0)}, 4, {vr(t0)}")
    e(f"v_lshlrev_b32 {vr(t1)}, 6, {vr(L15)}")
    e(f"s_mul_i32 s4, {sr(s_w)}, {48*64}")
    e(f"v_add3_u32 {vr(XAB)}, {vr(t0)}, {vr(t1)}, s4")
    e(f"s_mul_i32 s3, {sr(s_w)}, 48")
    e(f"s_mul_i32 s4, {sr(s_h)}, 12288")
    for qt in range(3):
        e(f"v_add3_u32 {vr(t0)}, {vr(L15)}, s3, {16*qt}")
        e(f"v_lshrrev_b32 {vr(t1)}, 5, {vr(t0)}")
        e(f"v_mul_u32_u24 {vr(t1)}, 0x60000, {vr(t1)}")
        e(f"v_and_b32 {vr(t0)}, 31, {vr(t0)}")
        e(f"v_and_b32 {vr(t2)}, 1, {vr(G)}")
        e(f"v_lshl_add_u32 {vr(t0)}, {vr(t2)}, 5, {vr(t0)}")
        e(f"v_lshlrev_b32 {vr(t0)}, 4, {vr(t0)}")
        e(f"v_lshrrev_b32 {vr(t2)}, 1, {vr(G)}")
        e(f"v_lshlrev_b32 {vr(t2)}, 10, {vr(t2)}")
        e(f"v_add3_u32 {vr(t0)}, {vr(t0)}, {vr(t1)}, {vr(t2)}")
        e(f"v_add_u32 {vr(VOUT+qt)}, s4, {vr(t0)}")

    s_mb = 79

    def dma(srd, vo_list, soff_s, unit_add):
        ins = []
        for i in range(3):
            ins.append(f"s_add_u32 m0, {sr(s_mb)}, {unit_add + 1024*i}")
            ins.append("s_nop 0")
            if "nodma" not in EXP:
                ins.append(f"buffer_load_dwordx4 {vr(vo_list[i])}, {sr(srd,4)}, {sr(soff_s)} offen lds")
        return ins

    def adv_iss():
        return [f"s_add_u32 {sr(s_mb)}, {sr(s_mb)}, 24576",
                f"s_cmp_ge_u32 {sr(s_mb)}, 147456",
                f"s_cselect_b32 {sr(s_mb)}, {sr(s_wlds)}, {sr(s_mb)}"]

    kvo = [VOKV, VOKV + 1, VOKV + 2]

    def issue_xw():
        ins = dma(sX, [VOX, VOX + 1, VOX + 2], s_xoff, 0) + dma(sW, [VOW, VOW + 1, VOW + 2], s_woff, 12288)
        ins += [f"s_add_u32 {sr(s_xoff)}, {sr(s_xoff)}, 64", f"s_add_u32 {sr(s_woff)}, {sr(s_woff)}, {32*12288}"]
        return ins + adv_iss()

    def issue_kk():
        ins = dma(sK, kvo, s_koff, 0) + [f"s_add_u32 {sr(s_koff)}, {sr(s_koff)}, 12288"]
        ins += dma(sK, kvo, s_koff, 12288) + [f"s_add_u32 {sr(s_koff)}, {sr(s_koff)}, 12288"]
        return ins + adv_iss()

    def issue_vk():
        ins = dma(sV, kvo, s_voff, 0) + dma(sK, kvo, s_koff, 12288)
        ins += [f"s_add_u32 {sr(s_voff)}, {sr(s_voff)}, 12288", f"s_add_u32 {sr(s_koff)}, {sr(s_koff)}, 12288"]
        return ins + adv_iss()

    def adv_cur():
        e(f"s_add_u32 {sr(s_cur)}, {sr(s_cur)}, 24576")
        e(f"s_cmp_eq_u32 {sr(s_cur)}, 147456")
        e(f"s_cselect_b32 {sr(s_cur)}, 0, {sr(s_cur)}")

    for s in (s_xoff, s_woff, s_koff, s_voff, s_cur, s_iss, s_n, s_flag):
        e(f"s_mov_b32 {sr(s)}, 0")
    e(f"s_mov_b32 {sr(s_mb)}, {sr(s_wlds)}")
    e(f"s_mov_b32 {sr(s_c)}, 0x{f32bits(c2):08x}")
    e(f"s_mov_b32 {sr(s_thr)}, 0x{f32bits(8.0/c2):08x}")
    for _ in range(5):
        for ins in issue_xw():
            e(ins)
    for i in range(144):
        e(f"v_accvgpr_write_b32 {ar(i)}, 0")

    XFS = [SB, SB + 12]
    s_nxt = 77
    LA = 4

    def calc_nxt():
        e(f"s_add_u32 {sr(s_nxt)}, {sr(s_cur)}, 24576")
        e(f"s_cmp_eq_u32 {sr(s_nxt)}, 147456")
        e(f"s_cselect_b32 {sr(s_nxt)}, 0, {sr(s_nxt)}")

    def q_groups(par):
        groups = []
        for dt in range(12):
            imm = 128 * (dt >> 2)
            reads = [(0, 2, "ds_read_b64_tr_b16 {dst}, " + f"{vr(VAC+(dt&3))} offset:{imm}"),
                     (2, 2, "ds_read_b64_tr_b16 {dst}, " + f"{vr(VAC+(dt&3))} offset:{imm+1536}")]
            mf = []
            for qt in range(3):
                a = (dt * 3 + qt) * 4
                mf.append(lambda b, a=a, qt=qt: f"v_mfma_f32_16x16x32_bf16 {ar(a,4)}, {vr(b,4)}, {vr(XFS[par]+4*qt,4)}, {ar(a,4)}")
            groups.append((reads, mf))
        return groups

    def q_addr(sbase, par):
        ins = [f"v_add_u32 {vr(KAC)}, {sr(sbase)}, {vr(XAB)}",
               f"s_add_u32 s78, {sr(sbase)}, 12288"]
        for i in range(4):
            ins.append(f"v_add_u32 {vr(VAC+i)}, s78, {vr(WAB+i)}")
        for qt in range(3):
            ins.append(f"ds_read_b128 {vr(XFS[par]+4*qt,4)}, {vr(KAC)} offset:{1024*qt}")
        return ins

    def q_body(par, issue, first=False, last=False):
        e("s_waitcnt vmcnt(18)")
        e("s_barrier")
        calc_nxt()
        if first:
            for ins in q_addr(s_cur, par):
                e(ins)
        ms = mfma_stream(q_groups(par), BUFS, LA, primed=not first,
                         next_groups=None if last else q_groups(1 - par),
                         addr_update=None if last else q_addr(s_nxt, 1 - par))
        merge(e, ms, issue, 0, 24)
        e(f"s_mov_b32 {sr(s_cur)}, {sr(s_nxt)}")

    stamp()
    q_body(0, issue_xw(), first=True)
    q_body(1, issue_xw())
    e.label("L_k1_q1")
    q_body(0, issue_xw())
    q_body(1, issue_xw())
    e(f"s_add_u32 {sr(s_n)}, {sr(s_n)}, 1")
    e(f"s_cmp_lt_u32 {sr(s_n)}, 6")
    e("s_cbranch_scc1 L_k1_q1")
    q_body(0, issue_xw())
    q_body(1, issue_kk())
    q_body(0, issue_vk())
    q_body(1, issue_vk())
    q_body(0, issue_vk())
    q_body(1, issue_vk(), last=True)

    stamp()
    e("s_nop 7")
    for Gd in range(6):
        for qt in range(3):
            qa = QF + (Gd * 3 + qt) * 4
            for half in range(2):
                a = ((2 * Gd + half) * 3 + qt) * 4
                for r in range(4):
                    e(f"v_accvgpr_read_b32 {vr(T+4*half+r)}, {ar(a+r)}")
            e(f"v_cvt_pk_bf16_f32 {vr(qa)}, {vr(T)}, {vr(T+1)}")
            e(f"v_cvt_pk_bf16_f32 {vr(qa+1)}, {vr(T+2)}, {vr(T+3)}")
            e(f"v_cvt_pk_bf16_f32 {vr(qa+2)}, {vr(T+4)}, {vr(T+5)}")
            e(f"v_cvt_pk_bf16_f32 {vr(qa+3)}, {vr(T+6)}, {vr(T+7)}")
            e("s_nop 1")
            e(f"v_permlane32_swap_b32 {vr(qa)}, {vr(qa+2)}")
            e(f"v_permlane32_swap_b32 {vr(qa+1)}, {vr(qa+3)}")
            e("s_nop 1")
            e(f"v_permlane16_swap_b32 {vr(qa)}, {vr(qa+2)}")
            e(f"v_permlane16_swap_b32 {vr(qa+1)}, {vr(qa+3)}")
    for i in range(144):
        e(f"v_accvgpr_write_b32 {ar(i)}, 0")
    for qt in range(3):
        e(f"v_mov_b32 {vr(MR+qt)}, 0xff800000")
        e(f"v_mov_b32 {vr(MTHR+qt)}, 0xff800000")
        e(f"v_mov_b32 {vr(MC+qt)}, 0")
        e(f"v_mov_b32 {vr(LS+qt)}, 0")
        e(f"v_mov_b32 {vr(AL+qt)}, 1.0")

    def qk_groups(sbuf, kaddr, koff):
        groups = []
        for kt in range(2):
            for t in range(6):
                imm = 128 * (t >> 1) + 6144 * kt + koff
                reads = [(0, 4, "ds_read_b128 {dst}, " + f"{vr(kaddr+(t&1))} offset:{imm}")]
                mf = []
                for qt in range(3):
                    d = SB + 24 * sbuf + (kt * 3 + qt) * 4
                    c = "0" if t == 0 else vr(d, 4)
                    mf.append(lambda b, d=d, c=c, t=t, qt=qt:
                              f"v_mfma_f32_16x16x32_bf16 {vr(d,4)}, {vr(b,4)}, {vr(QF+(t*3+qt)*4,4)}, {c}")
                groups.append((reads, mf))
        return groups

    def pv_groups(pbuf):
        groups = []
        for dt in range(12):
            imm = 128 * (dt >> 2)
            reads = [(0, 2, "ds_read_b64_tr_b16 {dst}, " + f"{vr(VAC+(dt&3))} offset:{imm}"),
                     (2, 2, "ds_read_b64_tr_b16 {dst}, " + f"{vr(VAC+(dt&3))} offset:{imm+6144}")]
            mf = []
            for qt in range(3):
                a = (dt * 3 + qt) * 4
                p = PB + 12 * pbuf + 4 * qt
                mf.append(lambda b, a=a, p=p: f"v_mfma_f32_16x16x32_bf16 {ar(a,4)}, {vr(b,4)}, {vr(p,4)}, {ar(a,4)}")
            groups.append((reads, mf))
        return groups

    slow_blocks = []

    def sm_list(buf):
        lab = e.newlabel("k1_sm")
        ins = []
        MX = T

        def sreg(qt, i):
            return SB + 24 * buf + ((i >> 2) * 3 + qt) * 4 + (i & 3)
        for qt in range(3):
            ins.append(f"v_max3_f32 {vr(MX+qt)}, {vr(sreg(qt,0))}, {vr(sreg(qt,1))}, {vr(sreg(qt,2))}")
            ins.append(f"v_max3_f32 {vr(MX+qt)}, {vr(MX+qt)}, {vr(sreg(qt,3))}, {vr(sreg(qt,4))}")
            ins.append(f"v_max3_f32 {vr(MX+qt)}, {vr(MX+qt)}, {vr(sreg(qt,5))}, {vr(sreg(qt,6))}")
            ins.append(f"v_max_f32 {vr(MX+qt)}, {vr(MX+qt)}, {vr(sreg(qt,7))}")
        for qt in range(3):
            ins.append(f"v_cmp_gt_f32 {sr(sF+2*qt,2)}, {vr(MX+qt)}, {vr(MTHR+qt)}")
        ins.append(f"s_or_b64 {sr(sF,2)}, {sr(sF,2)}, {sr(sF+2,2)}")
        ins.append(f"s_or_b64 {sr(sF,2)}, {sr(sF,2)}, {sr(sF+4,2)}")
        ins.append(f"s_cbranch_scc1 {lab}_slow")
        ins.append(f"{lab}_ret:")
        for qt in range(3):
            for i in range(8):
                ins.append(f"v_fma_f32 {vr(sreg(qt,i))}, {vr(sreg(qt,i))}, {sr(s_c)}, -{vr(MC+qt)}")
        for qt in range(3):
            for i in range(8):
                ins.append(f"v_exp_f32 {vr(sreg(qt,i))}, {vr(sreg(qt,i))}")
        for qt in range(3):
            ins.append(f"v_add_f32 {vr(MX+3+qt)}, {vr(sreg(qt,0))}, {vr(sreg(qt,1))}")
        for i in range(2, 8):
            for qt in range(3):
                ins.append(f"v_add_f32 {vr(MX+3+qt)}, {vr(MX+3+qt)}, {vr(sreg(qt,i))}")
        for qt in range(3):
            for i in range(4):
                ins.append(f"v_cvt_pk_bf16_f32 {vr(PB+12*buf+4*qt+i)}, {vr(sreg(qt,2*i))}, {vr(sreg(qt,2*i+1))}")
        for qt in range(3):
            ins.append(f"v_add_f32 {vr(LS+qt)}, {vr(LS+qt)}, {vr(MX+3+qt)}")
        sb = [f"{lab}_slow:"]
        tt = T + 6
        for qt in range(3):
            sb.append(f"v_mov_b32 {vr(tt)}, {vr(MX+qt)}")
            sb.append("s_nop 1")
            sb.append(f"v_permlane32_swap_b32 {vr(MX+qt)}, {vr(tt)}")
            sb.append(f"v_max_f32 {vr(MX+qt)}, {vr(MX+qt)}, {vr(tt)}")
            sb.append(f"v_mov_b32 {vr(tt)}, {vr(MX+qt)}")
            sb.append("s_nop 1")
            sb.append(f"v_permlane16_swap_b32 {vr(MX+qt)}, {vr(tt)}")
            sb.append(f"v_max_f32 {vr(MX+qt)}, {vr(MX+qt)}, {vr(tt)}")
            sb.append(f"v_max_f32 {vr(MX+qt)}, {vr(MX+qt)}, {vr(MR+qt)}")
            sb.append(f"v_sub_f32 {vr(tt)}, {vr(MR+qt)}, {vr(MX+qt)}")
            sb.append(f"v_mul_f32 {vr(tt)}, {sr(s_c)}, {vr(tt)}")
            sb.append(f"v_exp_f32 {vr(AL+qt)}, {vr(tt)}")
            sb.append(f"v_mov_b32 {vr(MR+qt)}, {vr(MX+qt)}")
            sb.append(f"v_add_f32 {vr(MTHR+qt)}, {sr(s_thr)}, {vr(MX+qt)}")
            sb.append(f"v_mul_f32 {vr(MC+qt)}, {sr(s_c)}, {vr(MX+qt)}")
            sb.append(f"v_mul_f32 {vr(LS+qt)}, {vr(LS+qt)}, {vr(AL+qt)}")
        sb.append(f"s_mov_b32 {sr(s_flag)}, 1")
        sb.append(f"s_branch {lab}_ret")
        slow_blocks.append(sb)
        return ins

    def rescale_check():
        lab = e.newlabel("k1_rs")
        e(f"s_cmp_eq_u32 {sr(s_flag)}, 0")
        e(f"s_cbranch_scc1 {lab}_skip")
        e("s_nop 7")
        for base in range(0, 144, 8):
            for i in range(8):
                e(f"v_accvgpr_read_b32 {vr(T+i)}, {ar(base+i)}")
            for i in range(8):
                qt = ((base + i) // 4) % 3
                e(f"v_mul_f32 {vr(T+i)}, {vr(T+i)}, {vr(AL+qt)}")
            for i in range(8):
                e(f"v_accvgpr_write_b32 {ar(base+i)}, {vr(T+i)}")
        e(f"s_mov_b32 {sr(s_flag)}, 0")
        e("s_nop 1")
        e.label(f"{lab}_skip")

    def v_addr(sbase):
        return [f"v_add_u32 {vr(VAC+i)}, {sr(sbase)}, {vr(VAB+i)}" for i in range(4)]

    e("s_waitcnt vmcnt(18)")
    e("s_barrier")
    calc_nxt()
    for i in range(2):
        e(f"v_add_u32 {vr(KAC+i)}, {sr(s_cur)}, {vr(KAB+i)}")
    g0 = qk_groups(0, KAC, 0)
    g1 = qk_groups(1, KAC, 12288)
    ms = mfma_stream(g0 + g1, BUFS, LA, next_groups=pv_groups(0), addr_update=v_addr(s_nxt))
    nm0 = 36 + 7
    side0 = issue_vk()
    cnt = 0
    cut = None
    for idx, (k, t) in enumerate(ms):
        if k == 'm':
            cnt += 1
            if cnt == nm0:
                cut = idx + 1
                break
    merge(e, ms[:cut], side0, 0, 20)
    merge(e, ms[cut:], sm_list(0))
    e(f"s_mov_b32 {sr(s_flag)}, 0")
    e(f"s_mov_b32 {sr(s_cur)}, {sr(s_nxt)}")

    def a_body(j_par, do_qk, do_sm, last=False):
        e("s_waitcnt vmcnt(18)")
        e("s_barrier")
        calc_nxt()
        if do_qk:
            e(f"s_add_u32 {sr(s_t0)}, {sr(s_cur)}, 12288")
            for i in range(2):
                e(f"v_add_u32 {vr(KAC+i)}, {sr(s_t0)}, {vr(KAB+i)}")
        groups = pv_groups(j_par)
        if do_qk:
            groups += qk_groups(j_par, KAC, 0)
        ms = mfma_stream(groups, BUFS, LA, primed=True,
                         next_groups=None if last else pv_groups(1 - j_par),
                         addr_update=None if last else v_addr(s_nxt))
        side = issue_vk()
        if do_sm and "nosm" not in EXP:
            side = side + sm_list(1 - j_par)
        merge(e, ms, side)
        if do_sm:
            if not do_qk:
                e("s_nop 7")
            rescale_check()
        e(f"s_mov_b32 {sr(s_cur)}, {sr(s_nxt)}")

    stamp()
    e(f"s_mov_b32 {sr(s_n)}, 0")
    e.label("L_k1_aloop")
    a_body(0, True, True)
    a_body(1, True, True)
    e(f"s_add_u32 {sr(s_n)}, {sr(s_n)}, 1")
    e(f"s_cmp_lt_u32 {sr(s_n)}, 7")
    e("s_cbranch_scc1 L_k1_aloop")
    a_body(0, False, True)
    a_body(1, False, False, last=True)

    stamp()
    tt = T + 8
    for qt in range(3):
        e(f"v_mov_b32 {vr(tt)}, {vr(LS+qt)}")
        e("s_nop 1")
        e(f"v_permlane32_swap_b32 {vr(LS+qt)}, {vr(tt)}")
        e(f"v_add_f32 {vr(LS+qt)}, {vr(LS+qt)}, {vr(tt)}")
        e(f"v_mov_b32 {vr(tt)}, {vr(LS+qt)}")
        e("s_nop 1")
        e(f"v_permlane16_swap_b32 {vr(LS+qt)}, {vr(tt)}")
        e(f"v_add_f32 {vr(LS+qt)}, {vr(LS+qt)}, {vr(tt)}")
        e(f"v_rcp_f32 {vr(LS+qt)}, {vr(LS+qt)}")
    e("s_nop 7")
    for qt in range(3):
        for Gd in range(6):
            qa = QF + (Gd * 3 + qt) * 4
            for half in range(2):
                a = ((2 * Gd + half) * 3 + qt) * 4
                for r in range(4):
                    e(f"v_accvgpr_read_b32 {vr(T+4*half+r)}, {ar(a+r)}")
            for i in range(8):
                e(f"v_mul_f32 {vr(T+i)}, {vr(T+i)}, {vr(LS+qt)}")
            for i in range(4):
                e(f"v_cvt_pk_bf16_f32 {vr(qa+i)}, {vr(T+2*i)}, {vr(T+2*i+1)}")
            e(f"s_movk_i32 s3, {Gd*2048}")
            e(f"buffer_store_dwordx4 {vr(qa,4)}, {vr(VOUT+qt)}, {sr(sO,4)}, s3 offen")
    e("s_waitcnt vmcnt(0)")
    stamp()
    if "stamp" in EXP:
        e("s_add_u32 s40, s36, 0xC800000")
        e("s_addc_u32 s41, s37, 0")
        e("s_mov_b32 s42, 0x100000")
        e("s_mov_b32 s43, 0x00020000")
        e("s_lshl_b32 s3, s2, 2")
        e(f"s_add_u32 s3, s3, {sr(s_w)}")
        e("s_lshl_b32 s3, s3, 6")
        e("v_mov_b32 v1, s3")
        for i in range(6):
            e(f"v_mov_b32 v2, s{86+2*i}")
            e(f"buffer_store_dword v2, v1, s[40:43], 0 offen offset:{4*i}")
        e("s_waitcnt vmcnt(0)")
    e.label("L_k1_end")
    e("s_endpgm")
    for sb in slow_blocks:
        for s in sb:
            if s.endswith(":"):
                e.label(s[:-1])
            else:
                e(s)


def gen_k2(e):
    ACC = 0
    FS = 8
    VOW = 56
    VOA = 57
    AB = 58
    BBs = 60
    AC = 61
    BC = 63
    VOP = 64
    T = 65
    sWO, sA, sP = 40, 44, 48
    s_blk, s_ks, s_rb, s_nc, s_w, s_wr, s_wc, s_mb, s_wooff, s_aoff, s_cur, s_nxt, s_n = range(60, 73)
    RING = 6
    STG = 24576
    NST = 48

    e.raw(".globl k2_kernel")
    e.raw(".p2align 8")
    e.raw(".type k2_kernel,@function")
    e.label("k2_kernel")
    e("s_cmp_ge_u32 s2, 240")
    e("s_cbranch_scc1 L_k2_end")
    e("s_load_dwordx2 s[16:17], s[0:1], 32")
    e("s_load_dwordx2 s[18:19], s[0:1], 72")
    e("s_load_dwordx2 s[36:37], s[0:1], 96")
    e("s_and_b32 s3, s2, 7")
    e(f"s_lshr_b32 {sr(s_blk)}, s3, 2")
    e(f"s_and_b32 {sr(s_ks)}, s3, 3")
    e("s_lshr_b32 s4, s2, 3")
    e("s_mul_i32 s5, s4, 52")
    e(f"s_lshr_b32 {sr(s_rb)}, s5, 8")
    e(f"s_mul_i32 s5, {sr(s_rb)}, 5")
    e(f"s_sub_u32 {sr(s_nc)}, s4, s5")
    e(f"v_lshrrev_b32 {vr(T)}, 6, v0")
    e("s_nop 0")
    e(f"v_readfirstlane_b32 {sr(s_w)}, {vr(T)}")
    e("s_waitcnt lgkmcnt(0)")
    e(f"s_lshr_b32 {sr(s_wr)}, {sr(s_w)}, 1")
    e(f"s_and_b32 {sr(s_wc)}, {sr(s_w)}, 1")
    e(f"s_cmp_eq_u32 {sr(s_blk)}, 0")
    e("s_cselect_b32 s4, s16, s18")
    e("s_cselect_b32 s5, s17, s19")
    e(f"s_mul_i32 s3, {sr(s_ks)}, {1536*1280}")
    e(f"s_lshl_b32 s6, {sr(s_nc)}, 8")
    e("s_add_u32 s3, s3, s6")
    e(f"s_add_u32 {sr(sWO)}, s4, s3")
    e(f"s_addc_u32 {sr(sWO+1)}, s5, 0")
    e(f"s_sub_u32 {sr(sWO+2)}, 7864320, s3")
    e(f"s_mov_b32 {sr(sWO+3)}, 0x00020000")
    e(f"s_mul_i32 s3, {sr(s_blk)}, 48")
    e(f"s_lshl_b32 s6, {sr(s_rb)}, 3")
    e("s_add_u32 s3, s3, s6")
    e("s_mul_i32 s3, s3, 393216")
    e(f"s_mul_i32 s6, {sr(s_ks)}, {96*1024}")
    e("s_add_u32 s3, s3, s6")
    e(f"s_add_u32 {sr(sA)}, s36, s3")
    e(f"s_addc_u32 {sr(sA+1)}, s37, 0")
    e(f"s_sub_u32 {sr(sA+2)}, {8*393216}, s6")
    e(f"s_mov_b32 {sr(sA+3)}, 0x00020000")
    e(f"s_mul_i32 s3, {sr(s_ks)}, 60")
    e(f"s_mul_i32 s6, {sr(s_blk)}, 30")
    e("s_add_u32 s3, s3, s6")
    e(f"s_mul_i32 s6, {sr(s_rb)}, 5")
    e("s_add_u32 s3, s3, s6")
    e(f"s_add_u32 s3, s3, {sr(s_nc)}")
    e("s_lshl_b32 s3, s3, 17")
    e(f"s_add_u32 s3, s3, {WS_P_OFF}")
    e(f"s_add_u32 {sr(sP)}, s36, s3")
    e(f"s_addc_u32 {sr(sP+1)}, s37, 0")
    e(f"s_mov_b32 {sr(sP+2)}, 131072")
    e(f"s_mov_b32 {sr(sP+3)}, 0x00020000")

    LANE, HH, GP, R, C = 1, 2, 3, 4, 5
    t0, t1, t2, t3 = T, T + 1, T + 2, T + 3
    e(f"v_and_b32 {vr(LANE)}, 63, v0")
    e(f"v_lshrrev_b32 {vr(HH)}, 5, {vr(LANE)}")
    e(f"v_bfe_u32 {vr(GP)}, {vr(LANE)}, 4, 1")
    e(f"v_bfe_u32 {vr(R)}, {vr(LANE)}, 2, 2")
    e(f"v_and_b32 {vr(C)}, 3, {vr(LANE)}")
    e(f"v_lshrrev_b32 {vr(t0)}, 4, {vr(LANE)}")
    e(f"v_and_b32 {vr(t1)}, 15, {vr(LANE)}")
    e(f"v_lshlrev_b32 {vr(t2)}, 2, {vr(t0)}")
    e(f"v_xor_b32 {vr(t1)}, {vr(t1)}, {vr(t2)}")
    e(f"v_lshlrev_b32 {vr(t1)}, 4, {vr(t1)}")
    e(f"v_mul_u32_u24 {vr(t0)}, 1280, {vr(t0)}")
    e(f"s_mul_i32 s3, {sr(s_w)}, {8*1280}")
    e(f"v_add3_u32 {vr(VOW)}, {vr(t0)}, {vr(t1)}, s3")
    e(f"s_mul_i32 s3, {sr(s_w)}, {2*393216}")
    e(f"v_lshlrev_b32 {vr(VOA)}, 4, {vr(LANE)}")
    e(f"v_add_u32 {vr(VOA)}, s3, {vr(VOA)}")
    e(f"v_lshlrev_b32 {vr(t0)}, 2, {vr(HH)}")
    e(f"v_add_u32 {vr(t0)}, {vr(t0)}, {vr(R)}")
    e(f"v_lshlrev_b32 {vr(t0)}, 8, {vr(t0)}")
    e(f"v_and_b32 {vr(t1)}, 1, {vr(C)}")
    e(f"v_lshlrev_b32 {vr(t1)}, 3, {vr(t1)}")
    e(f"v_add_u32 {vr(t0)}, {vr(t0)}, {vr(t1)}")
    e(f"v_lshlrev_b32 {vr(t2)}, 2, {vr(R)}")
    e(f"s_lshl_b32 s3, {sr(s_wc)}, 3")
    for nt in range(2):
        e(f"v_lshrrev_b32 {vr(t1)}, 1, {vr(C)}")
        e(f"v_lshl_add_u32 {vr(t1)}, {vr(GP)}, 1, {vr(t1)}")
        e(f"v_add3_u32 {vr(t1)}, {vr(t1)}, s3, {4*nt}")
        e(f"v_xor_b32 {vr(t1)}, {vr(t1)}, {vr(t2)}")
        e(f"v_lshlrev_b32 {vr(t1)}, 4, {vr(t1)}")
        e(f"v_add3_u32 {vr(AB+nt)}, {vr(t0)}, {vr(t1)}, 0")
        e(f"v_add_u32 {vr(AB+nt)}, 16384, {vr(AB+nt)}")
    e(f"s_lshl_b32 s3, {sr(s_wr)}, 13")
    e(f"v_lshlrev_b32 {vr(BBs)}, 4, {vr(LANE)}")
    e(f"v_add_u32 {vr(BBs)}, s3, {vr(BBs)}")
    e(f"s_lshl_b32 s3, {sr(s_w)}, 15")
    e(f"v_lshlrev_b32 {vr(VOP)}, 4, {vr(LANE)}")
    e(f"v_add_u32 {vr(VOP)}, s3, {vr(VOP)}")

    def issue():
        ins = []
        for i in range(4):
            ins.append(f"s_add_u32 m0, {sr(s_mb)}, {1024*i}")
            ins.append(f"s_add_u32 s3, {sr(s_aoff)}, {(i>>1)*393216 + (i&1)*1024}")
            ins.append(f"buffer_load_dwordx4 {vr(VOA)}, {sr(sA,4)}, s3 offen lds")
        for i in range(2):
            ins.append(f"s_add_u32 m0, s78, {1024*i}")
            ins.append(f"s_add_u32 s3, {sr(s_wooff)}, {i*4*1280}")
            ins.append(f"buffer_load_dwordx4 {vr(VOW)}, {sr(sWO,4)}, s3 offen lds")
        ins += [f"s_add_u32 {sr(s_aoff)}, {sr(s_aoff)}, 2048",
                f"s_add_u32 {sr(s_wooff)}, {sr(s_wooff)}, {32*1280}",
                f"s_add_u32 {sr(s_mb)}, {sr(s_mb)}, {STG}",
                f"s_cmp_ge_u32 {sr(s_mb)}, {RING*STG}",
                f"s_cselect_b32 {sr(s_mb)}, s76, {sr(s_mb)}",
                f"s_add_u32 s78, {sr(s_mb)}, s77"]
        return ins

    e(f"s_lshl_b32 s76, {sr(s_w)}, 12")
    e(f"s_lshl_b32 s77, {sr(s_w)}, 11")
    e("s_sub_u32 s77, 16384, s77")
    e(f"s_mov_b32 {sr(s_mb)}, s76")
    e(f"s_add_u32 s78, {sr(s_mb)}, s77")
    e(f"s_mov_b32 {sr(s_aoff)}, 0")
    e(f"s_mov_b32 {sr(s_wooff)}, 0")
    e(f"s_mov_b32 {sr(s_cur)}, 0")
    e(f"s_mov_b32 {sr(s_n)}, 0")
    for _ in range(RING - 1):
        for ins in issue():
            e(ins)
    for i in range(128):
        e(f"v_accvgpr_write_b32 {ar(ACC+i)}, 0")

    def reads(ks, fs):
        b = FS + 24 * fs
        r = []
        for nt in range(2):
            r.append(f"ds_read_b64_tr_b16 {vr(b+4*nt,2)}, {vr(AC+nt)} offset:{2048*ks}")
            r.append(f"ds_read_b64_tr_b16 {vr(b+4*nt+2,2)}, {vr(AC+nt)} offset:{2048*ks+4096}")
        for qt in range(4):
            r.append(f"ds_read_b128 {vr(b+8+4*qt,4)}, {vr(BC)} offset:{2048*qt+1024*ks}")
        return r

    def mfmas(fs):
        b = FS + 24 * fs
        m = []
        for qt in range(4):
            for nt in range(2):
                a = ACC + (qt * 2 + nt) * 16
                m.append(f"v_mfma_f32_32x32x16_bf16 {ar(a,16)}, {vr(b+4*nt,4)}, {vr(b+8+4*qt,4)}, {ar(a,16)}")
        return m

    def addr(sb):
        return [f"v_add_u32 {vr(AC)}, {sr(sb)}, {vr(AB)}", f"v_add_u32 {vr(AC+1)}, {sr(sb)}, {vr(AB+1)}",
                f"v_add_u32 {vr(BC)}, {sr(sb)}, {vr(BBs)}"]

    def inter(m, side):
        k = 0
        for i, x in enumerate(m):
            e(x)
            tgt = ((i + 1) * len(side) + len(m) - 1) // len(m)
            while k < tgt:
                e(side[k])
                k += 1

    def stage(first=False, last=False):
        e("s_waitcnt vmcnt(18)")
        e("s_barrier")
        e(f"s_add_u32 {sr(s_nxt)}, {sr(s_cur)}, {STG}")
        e(f"s_cmp_eq_u32 {sr(s_nxt)}, {RING*STG}")
        e(f"s_cselect_b32 {sr(s_nxt)}, 0, {sr(s_nxt)}")
        if first:
            for x in addr(s_cur) + reads(0, 0):
                e(x)
        for x in reads(1, 1):
            e(x)
        e("s_waitcnt lgkmcnt(8)")
        inter(mfmas(0), issue())
        if not last:
            for x in addr(s_nxt) + reads(0, 0):
                e(x)
            e("s_waitcnt lgkmcnt(8)")
        else:
            e("s_waitcnt lgkmcnt(0)")
        inter(mfmas(1), [])
        e(f"s_mov_b32 {sr(s_cur)}, {sr(s_nxt)}")

    stage(first=True)
    e.label("L_k2_loop")
    stage()
    e(f"s_add_u32 {sr(s_n)}, {sr(s_n)}, 1")
    e(f"s_cmp_lt_u32 {sr(s_n)}, {NST-2}")
    e("s_cbranch_scc1 L_k2_loop")
    stage(last=True)
    e("s_nop 15")
    for i in range(32):
        e(f"s_movk_i32 s3, {1024*i}")
        e(f"buffer_store_dwordx4 {ar(ACC+4*i,4)}, {vr(VOP)}, {sr(sP,4)}, s3 offen")
    e("s_waitcnt vmcnt(0)")
    e.label("L_k2_end")
    e("s_endpgm")


def gen_k3(e):
    e.raw(".globl k3_kernel")
    e.raw(".p2align 8")
    e.raw(".type k3_kernel,@function")
    e.label("k3_kernel")
    e("s_cmp_ge_u32 s2, 1920")
    e("s_cbranch_scc1 L_k3_end")
    e("s_load_dwordx2 s[4:5], s[0:1], 80")
    e("s_load_dwordx2 s[6:7], s[0:1], 96")
    e("s_waitcnt lgkmcnt(0)")
    e("s_mov_b32 s8, s4")
    e("s_mov_b32 s9, s5")
    e("s_mov_b32 s10, 3932160")
    e("s_mov_b32 s11, 0x00020000")
    e(f"s_add_u32 s12, s6, {WS_P_OFF}")
    e("s_addc_u32 s13, s7, 0")
    e("s_mov_b32 s14, 31457280")
    e("s_mov_b32 s15, 0x00020000")
    e("s_lshl_b32 s16, s2, 12")
    e("v_lshlrev_b32 v2, 4, v0")
    e("v_add_u32 v2, s16, v2")
    for ks in range(4):
        e(f"s_mov_b32 s19, {ks*60*131072}")
        e(f"buffer_load_dwordx4 v[{8+4*ks}:{11+4*ks}], v2, s[12:15], s19 offen")
    e("s_lshr_b32 s17, s2, 5")
    e("s_cmp_ge_u32 s17, 30")
    e("s_cselect_b32 s18, 1, 0")
    e("s_mul_i32 s20, s18, 30")
    e("s_sub_u32 s17, s17, s20")
    e("s_mul_i32 s20, s17, 52")
    e("s_lshr_b32 s20, s20, 8")
    e("s_mul_i32 s21, s20, 5")
    e("s_sub_u32 s21, s17, s21")
    e("s_bfe_u32 s22, s2, 0x20003")
    e("s_and_b32 s23, s2, 7")
    e("s_lshr_b32 s24, s23, 1")
    e("s_and_b32 s25, s23, 1")
    e("s_lshr_b32 s26, s22, 1")
    e("s_and_b32 s27, s22, 1")
    e("s_lshl_b32 s28, s20, 8")
    e("s_lshl_b32 s29, s26, 7")
    e("s_add_u32 s28, s28, s29")
    e("s_lshl_b32 s29, s24, 5")
    e("s_add_u32 s28, s28, s29")
    e("s_mul_i32 s30, s18, 640")
    e("s_lshl_b32 s29, s21, 7")
    e("s_add_u32 s30, s30, s29")
    e("s_lshl_b32 s29, s27, 6")
    e("s_add_u32 s30, s30, s29")
    e("s_lshl_b32 s29, s25, 5")
    e("s_add_u32 s30, s30, s29")
    e("v_and_b32 v3, 31, v0")
    e("v_add_u32 v3, s28, v3")
    e("v_mul_u32_u24 v3, 2560, v3")
    e("v_lshrrev_b32 v4, 6, v0")
    e("v_lshlrev_b32 v4, 3, v4")
    e("v_bfe_u32 v5, v0, 5, 1")
    e("v_lshl_add_u32 v4, v5, 2, v4")
    e("v_add_u32 v4, s30, v4")
    e("v_lshl_add_u32 v3, v4, 1, v3")
    e("s_waitcnt vmcnt(0)")
    for i in range(4):
        e(f"v_add_f32 v{8+i}, v{8+i}, v{12+i}")
        e(f"v_add_f32 v{16+i}, v{16+i}, v{20+i}")
    for i in range(4):
        e(f"v_add_f32 v{8+i}, v{8+i}, v{16+i}")
    e("v_cvt_pk_bf16_f32 v24, v8, v9")
    e("v_cvt_pk_bf16_f32 v25, v10, v11")
    e("buffer_store_dwordx2 v[24:25], v3, s[8:11], 0 offen")
    e("s_waitcnt vmcnt(0)")
    e.label("L_k3_end")
    e("s_endpgm")


def desc2(name, nfv, acc, sgpr=96):
    return f""".amdhsa_kernel {name}
  .amdhsa_next_free_vgpr {nfv}
  .amdhsa_next_free_sgpr {sgpr}
  .amdhsa_accum_offset {acc}
  .amdhsa_group_segment_fixed_size 0
  .amdhsa_kernarg_size 104
  .amdhsa_user_sgpr_count 2
  .amdhsa_user_sgpr_kernarg_segment_ptr 1
  .amdhsa_system_sgpr_workgroup_id_x 1
.end_amdhsa_kernel
"""


def main():
    e = Emitter()
    out = HEADER
    out += "; @launch kernel=k1_kernel grid=(512,1,1) block=(256,1,1) lds=147456\n"
    out += "; @launch kernel=k2_kernel grid=(240,1,1) block=(256,1,1) lds=147456\n"
    out += "; @launch kernel=k3_kernel grid=(1920,1,1) block=(256,1,1) lds=0\n"
    out += '.amdgcn_target "amdgcn-amd-amdhsa--gfx950"\n.text\n'
    gen_k1(e)
    gen_k2(e)
    gen_k3(e)
    out += e.text()
    out += '.section .rodata,"a"\n.p2align 6\n'
    out += desc2("k1_kernel", 400, 256, 100)
    out += ".p2align 6\n" + desc2("k2_kernel", 72+128, 72)
    out += ".p2align 6\n" + desc("k3_kernel", 32)
    path = sys.argv[1] if len(sys.argv) > 1 else f"cdna_kernels/{NAME}.s"
    open(path, "w").write(out)


if __name__ == "__main__":
    main()
```

```python
import math
import struct
import sys
import os
EXP = os.environ.get("EXP", "")

from gen import HEADER, NAME, WS_P_OFF, Emitter, vr, sr, desc


def ar(a, n=1):
    return f"a{a}" if n == 1 else f"a[{a}:{a+n-1}]"


def f32bits(x):
    return struct.unpack("<I", struct.pack("<f", x))[0]


def mfma_stream(groups, bufs, lookahead, primed=False, next_groups=None, addr_update=None, pre_out=0):
    out = []
    nb = len(bufs)
    assert lookahead < nb
    allg = list(groups) + (list(next_groups[:lookahead]) if next_groups else [])
    if next_groups:
        assert len(groups) % nb == 0
    issued = 0
    last = {}

    def issue(o, emit=True):
        nonlocal issued
        b = bufs[o % nb]
        if o == len(groups) and emit and addr_update:
            for t in addr_update:
                out.append(('i', t))
                if t.startswith("ds_read"):
                    issued += 1
        for (roff, rn, fmt) in allg[o][0]:
            if emit:
                out.append(('i', fmt.format(dst=vr(b + roff, rn))))
            issued += 1
        last[o] = issued
    nxt = 0
    while nxt < min(lookahead, len(allg)):
        issue(nxt, emit=not primed)
        nxt += 1
    for o, (reads, mf) in enumerate(groups):
        if nxt < len(allg):
            issue(nxt)
            nxt += 1
        n = issued - last[o]
        assert n <= 15, n
        out.append(('i', f"s_waitcnt lgkmcnt({n})"))
        for fn in mf:
            out.append(('m', fn(bufs[o % nb])))
    return out


def merge(e, ms, side, start=0, end=None):
    nm = sum(1 for k, _ in ms if k == 'm')
    if end is None:
        end = nm
    span = max(1, end - start)
    ns = len(side)
    mi = 0
    si = 0
    for k, t in ms:
        e(t)
        if k == 'm':
            if mi >= start:
                tgt = min(ns, ((mi - start + 1) * ns + span - 1) // span)
                while si < tgt or (si < ns and side[si].endswith(":")):
                    s = side[si]
                    if s.endswith(":"):
                        e.label(s[:-1])
                    else:
                        e(s)
                    si += 1
            mi += 1
    while si < ns:
        s = side[si]
        if s.endswith(":"):
            e.label(s[:-1])
        else:
            e(s)
        si += 1


def gen_k1(e):
    QF = 0
    SB = 72
    PB = 120
    BUFS = [144 + 4 * i for i in range(6)]
    KAB, VAB, KAC, VAC = 176, 178, 182, 184
    WAB, XAB = 188, 192
    VOKV, VOW, VOX = 193, 196, 199
    MC, MTHR, LS, AL, MR = 202, 205, 208, 211, 214
    T = 217
    VOUT = 229

    sX, sW, sK, sV, sO = 40, 44, 48, 52, 56
    s_n, s_cur, s_iss, s_xoff, s_woff, s_koff, s_voff, s_wlds, s_t0, s_t1, s_c, s_thr, s_flag = range(60, 73)
    s_b, s_h, s_blk, s_w = 73, 74, 75, 76
    sF = 80

    c2 = (192 ** -0.5) * math.log2(math.e)
    stamp_n = [0]

    def stamp():
        if "stamp" in EXP:
            e(f"s_memtime s[{88+2*stamp_n[0]}:{89+2*stamp_n[0]}]")
            e("s_waitcnt lgkmcnt(0)")
            stamp_n[0] += 1

    e.raw(".globl k1_kernel")
    e.raw(".p2align 8")
    e.raw(".type k1_kernel,@function")
    e.label("k1_kernel")
    e("s_cmp_ge_u32 s2, 256")
    e("s_cbranch_scc1 L_k1_end")
    stamp()
    e("s_load_dwordx16 s[16:31], s[0:1], 0")
    e("s_load_dwordx4 s[32:35], s[0:1], 64")
    e("s_load_dwordx2 s[36:37], s[0:1], 96")
    e("s_and_b32 s3, s2, 7")
    e("s_lshr_b32 s4, s2, 3")
    e(f"s_and_b32 {sr(s_b)}, s4, 7")
    e("s_lshr_b32 s4, s4, 3")
    e("s_lshl_b32 s4, s4, 1")
    e("s_lshl_b32 s3, s3, 3")
    e("s_add_u32 s3, s3, s4")
    e(f"s_lshr_b32 {sr(s_blk)}, s3, 5")
    e(f"s_and_b32 {sr(s_h)}, s3, 31")
    e(f"v_lshrrev_b32 {vr(T)}, 6, v0")
    e("s_nop 0")
    e(f"v_readfirstlane_b32 {sr(s_w)}, {vr(T)}")
    e("s_waitcnt lgkmcnt(0)")
    e(f"s_cmp_eq_u32 {sr(s_blk)}, 0")
    for i, (a, b) in enumerate(((16, 26), (17, 27), (18, 28), (19, 29), (20, 30), (21, 31), (22, 32), (23, 33))):
        e(f"s_cselect_b32 s{4+i}, s{a}, s{b}")
    e(f"s_mul_i32 s3, {sr(s_b)}, 245760")
    e(f"s_add_u32 {sr(sX)}, s4, s3")
    e(f"s_addc_u32 {sr(sX+1)}, s5, 0")
    e(f"s_mov_b32 {sr(sX+2)}, 245760")
    e(f"s_mov_b32 {sr(sX+3)}, 0x00020000")
    e(f"s_mul_i32 s3, {sr(s_h)}, 384")
    e(f"s_add_u32 {sr(sW)}, s10, s3")
    e(f"s_addc_u32 {sr(sW+1)}, s11, 0")
    e(f"s_sub_u32 {sr(sW+2)}, 7864320, s3")
    e(f"s_mov_b32 {sr(sW+3)}, 0x00020000")
    e(f"s_lshl_b32 s3, {sr(s_b)}, 5")
    e(f"s_add_u32 s3, s3, {sr(s_h)}")
    e("s_mul_i32 s3, s3, 196608")
    e(f"s_add_u32 {sr(sK)}, s6, s3")
    e(f"s_addc_u32 {sr(sK+1)}, s7, 0")
    e(f"s_mov_b32 {sr(sK+2)}, 196608")
    e(f"s_mov_b32 {sr(sK+3)}, 0x00020000")
    e(f"s_add_u32 {sr(sV)}, s8, s3")
    e(f"s_addc_u32 {sr(sV+1)}, s9, 0")
    e(f"s_mov_b32 {sr(sV+2)}, 196608")
    e(f"s_mov_b32 {sr(sV+3)}, 0x00020000")
    e(f"s_lshl_b32 s3, {sr(s_blk)}, 3")
    e(f"s_add_u32 s3, s3, {sr(s_b)}")
    e("s_mul_i32 s3, s3, 2359296")
    e(f"s_add_u32 {sr(sO)}, s36, s3")
    e(f"s_addc_u32 {sr(sO+1)}, s37, 0")
    e(f"s_mov_b32 {sr(sO+2)}, 2359296")
    e(f"s_mov_b32 {sr(sO+3)}, 0x00020000")
    e(f"s_mul_i32 {sr(s_wlds)}, {sr(s_w)}, 3072")

    LANE, G, L15, R, C = 1, 2, 3, 4, 5
    t0, t1, t2, t3, t4 = T, T + 1, T + 2, T + 3, T + 4
    e(f"v_and_b32 {vr(LANE)}, 63, v0")
    e(f"v_lshrrev_b32 {vr(G)}, 4, {vr(LANE)}")
    e(f"v_and_b32 {vr(L15)}, 15, {vr(LANE)}")
    e(f"v_bfe_u32 {vr(R)}, {vr(LANE)}, 2, 2")
    e(f"v_and_b32 {vr(C)}, 3, {vr(LANE)}")
    e("s_movk_i32 s3, 2731")
    e(f"s_lshl_b32 s4, {sr(s_w)}, 3")
    for i in range(3):
        e(f"v_add_u32 {vr(t0)}, {64*i}, {vr(LANE)}")
        e(f"v_mul_lo_u32 {vr(t1)}, {vr(t0)}, s3")
        e(f"v_lshrrev_b32 {vr(t1)}, 16, {vr(t1)}")
        e(f"v_mul_u32_u24 {vr(t2)}, 24, {vr(t1)}")
        e(f"v_sub_u32 {vr(t0)}, {vr(t0)}, {vr(t2)}")
        e(f"v_add_u32 {vr(t1)}, s4, {vr(t1)}")
        e(f"v_and_b32 {vr(t2)}, 6, {vr(t1)}")
        e(f"v_xor_b32 {vr(t2)}, {vr(t0)}, {vr(t2)}")
        e(f"v_lshlrev_b32 {vr(t2)}, 4, {vr(t2)}")
        e(f"v_mul_u32_u24 {vr(t3)}, 384, {vr(t1)}")
        e(f"v_add_u32 {vr(VOKV+i)}, {vr(t2)}, {vr(t3)}")
        e(f"v_and_b32 {vr(t2)}, 2, {vr(t1)}")
        e(f"v_bfe_u32 {vr(t3)}, {vr(t1)}, 3, 1")
        e(f"v_lshlrev_b32 {vr(t3)}, 2, {vr(t3)}")
        e(f"v_or_b32 {vr(t2)}, {vr(t2)}, {vr(t3)}")
        e(f"v_xor_b32 {vr(t2)}, {vr(t0)}, {vr(t2)}")
        e(f"v_lshlrev_b32 {vr(t2)}, 4, {vr(t2)}")
        e(f"v_mul_u32_u24 {vr(t3)}, 12288, {vr(t1)}")
        e(f"v_add_u32 {vr(VOW+i)}, {vr(t2)}, {vr(t3)}")
    e(f"v_lshrrev_b32 {vr(t0)}, 2, {vr(LANE)}")
    e(f"v_lshrrev_b32 {vr(t1)}, 1, {vr(t0)}")
    e(f"v_and_b32 {vr(t1)}, 2, {vr(t1)}")
    e(f"v_xor_b32 {vr(t1)}, {vr(C)}, {vr(t1)}")
    e(f"v_lshlrev_b32 {vr(t1)}, 4, {vr(t1)}")
    e(f"v_mul_u32_u24 {vr(t0)}, 1280, {vr(t0)}")
    e(f"s_mul_i32 s4, {sr(s_w)}, {48*1280}")
    e(f"v_add3_u32 {vr(VOX)}, {vr(t0)}, {vr(t1)}, s4")
    e(f"v_add_u32 {vr(VOX+1)}, {16*1280}, {vr(VOX)}")
    e(f"v_add_u32 {vr(VOX+2)}, {32*1280}, {vr(VOX)}")
    e(f"v_and_b32 {vr(t2)}, 6, {vr(L15)}")
    e(f"v_mul_u32_u24 {vr(t3)}, 384, {vr(L15)}")
    for tp in range(2):
        e(f"v_add_u32 {vr(t0)}, {4*tp}, {vr(G)}")
        e(f"v_xor_b32 {vr(t0)}, {vr(t0)}, {vr(t2)}")
        e(f"v_lshlrev_b32 {vr(t0)}, 4, {vr(t0)}")
        e(f"v_add3_u32 {vr(KAB+tp)}, {vr(t0)}, {vr(t3)}, 0")
    e(f"v_lshlrev_b32 {vr(t4)}, 2, {vr(G)}")
    e(f"v_add_u32 {vr(t4)}, {vr(t4)}, {vr(R)}")
    e(f"v_and_b32 {vr(t2)}, 6, {vr(t4)}")
    e(f"v_mul_u32_u24 {vr(t3)}, 384, {vr(t4)}")
    e(f"v_and_b32 {vr(t1)}, 1, {vr(C)}")
    e(f"v_lshlrev_b32 {vr(t1)}, 3, {vr(t1)}")
    e(f"v_add_u32 {vr(t3)}, {vr(t3)}, {vr(t1)}")
    for d4 in range(4):
        e(f"v_lshrrev_b32 {vr(t0)}, 1, {vr(C)}")
        e(f"v_add_u32 {vr(t0)}, {2*d4}, {vr(t0)}")
        e(f"v_xor_b32 {vr(t0)}, {vr(t0)}, {vr(t2)}")
        e(f"v_lshlrev_b32 {vr(t0)}, 4, {vr(t0)}")
        e(f"v_add_u32 {vr(VAB+d4)}, {vr(t0)}, {vr(t3)}")
    e(f"v_lshlrev_b32 {vr(t4)}, 3, {vr(G)}")
    e(f"v_add_u32 {vr(t4)}, {vr(t4)}, {vr(R)}")
    e(f"v_and_b32 {vr(t2)}, 2, {vr(R)}")
    e(f"v_and_b32 {vr(t0)}, 1, {vr(G)}")
    e(f"v_lshlrev_b32 {vr(t0)}, 2, {vr(t0)}")
    e(f"v_or_b32 {vr(t2)}, {vr(t2)}, {vr(t0)}")
    e(f"v_mul_u32_u24 {vr(t3)}, 384, {vr(t4)}")
    e(f"v_add_u32 {vr(t3)}, {vr(t3)}, {vr(t1)}")
    for d4 in range(4):
        e(f"v_lshrrev_b32 {vr(t0)}, 1, {vr(C)}")
        e(f"v_add_u32 {vr(t0)}, {2*d4}, {vr(t0)}")
        e(f"v_xor_b32 {vr(t0)}, {vr(t0)}, {vr(t2)}")
        e(f"v_lshlrev_b32 {vr(t0)}, 4, {vr(t0)}")
        e(f"v_add3_u32 {vr(WAB+d4)}, {vr(t0)}, {vr(t3)}, 0")
    e(f"v_lshrrev_b32 {vr(t0)}, 1, {vr(L15)}")
    e(f"v_and_b32 {vr(t0)}, 2, {vr(t0)}")
    e(f"v_xor_b32 {vr(t0)}, {vr(G)}, {vr(t0)}")
    e(f"v_lshlrev_b32 {vr(t0)}, 4, {vr(t0)}")
    e(f"v_lshlrev_b32 {vr(t1)}, 6, {vr(L15)}")
    e(f"s_mul_i32 s4, {sr(s_w)}, {48*64}")
    e(f"v_add3_u32 {vr(XAB)}, {vr(t0)}, {vr(t1)}, s4")
    e(f"s_mul_i32 s3, {sr(s_w)}, 48")
    e(f"s_mul_i32 s4, {sr(s_h)}, 12288")
    for qt in range(3):
        e(f"v_add3_u32 {vr(t0)}, {vr(L15)}, s3, {16*qt}")
        e(f"v_lshrrev_b32 {vr(t1)}, 5, {vr(t0)}")
        e(f"v_mul_u32_u24 {vr(t1)}, 0x60000, {vr(t1)}")
        e(f"v_and_b32 {vr(t0)}, 31, {vr(t0)}")
        e(f"v_and_b32 {vr(t2)}, 1, {vr(G)}")
        e(f"v_lshl_add_u32 {vr(t0)}, {vr(t2)}, 5, {vr(t0)}")
        e(f"v_lshlrev_b32 {vr(t0)}, 4, {vr(t0)}")
        e(f"v_lshrrev_b32 {vr(t2)}, 1, {vr(G)}")
        e(f"v_lshlrev_b32 {vr(t2)}, 10, {vr(t2)}")
        e(f"v_add3_u32 {vr(t0)}, {vr(t0)}, {vr(t1)}, {vr(t2)}")
        e(f"v_add_u32 {vr(VOUT+qt)}, s4, {vr(t0)}")

    s_mb = 79

    def dma(srd, vo_list, soff_s, unit_add):
        ins = []
        for i in range(3):
            ins.append(f"s_add_u32 m0, {sr(s_mb)}, {unit_add + 1024*i}")
            ins.append("s_nop 0")
            if "nodma" not in EXP:
                ins.append(f"buffer_load_dwordx4 {vr(vo_list[i])}, {sr(srd,4)}, {sr(soff_s)} offen lds")
        return ins

    def adv_iss():
        return [f"s_add_u32 {sr(s_mb)}, {sr(s_mb)}, 24576",
                f"s_cmp_ge_u32 {sr(s_mb)}, 147456",
                f"s_cselect_b32 {sr(s_mb)}, {sr(s_wlds)}, {sr(s_mb)}"]

    kvo = [VOKV, VOKV + 1, VOKV + 2]

    def issue_xw():
        ins = dma(sX, [VOX, VOX + 1, VOX + 2], s_xoff, 0) + dma(sW, [VOW, VOW + 1, VOW + 2], s_woff, 12288)
        ins += [f"s_add_u32 {sr(s_xoff)}, {sr(s_xoff)}, 64", f"s_add_u32 {sr(s_woff)}, {sr(s_woff)}, {32*12288}"]
        return ins + adv_iss()

    def issue_kk():
        ins = dma(sK, kvo, s_koff, 0) + [f"s_add_u32 {sr(s_koff)}, {sr(s_koff)}, 12288"]
        ins += dma(sK, kvo, s_koff, 12288) + [f"s_add_u32 {sr(s_koff)}, {sr(s_koff)}, 12288"]
        return ins + adv_iss()

    def issue_vk():
        ins = dma(sV, kvo, s_voff, 0) + dma(sK, kvo, s_koff, 12288)
        ins += [f"s_add_u32 {sr(s_voff)}, {sr(s_voff)}, 12288", f"s_add_u32 {sr(s_koff)}, {sr(s_koff)}, 12288"]
        return ins + adv_iss()

    def adv_cur():
        e(f"s_add_u32 {sr(s_cur)}, {sr(s_cur)}, 24576")
        e(f"s_cmp_eq_u32 {sr(s_cur)}, 147456")
        e(f"s_cselect_b32 {sr(s_cur)}, 0, {sr(s_cur)}")

    for s in (s_xoff, s_woff, s_koff, s_voff, s_cur, s_iss, s_n, s_flag):
        e(f"s_mov_b32 {sr(s)}, 0")
    e(f"s_mov_b32 {sr(s_mb)}, {sr(s_wlds)}")
    e(f"s_mov_b32 {sr(s_c)}, 0x{f32bits(c2):08x}")
    e(f"s_mov_b32 {sr(s_thr)}, 0x{f32bits(8.0/c2):08x}")
    for _ in range(5):
        for ins in issue_xw():
            e(ins)
    s_head = 87
    e(f"s_mov_b32 {sr(s_head)}, 0")
    e.label("L_k1_head")
    e(f"s_mov_b32 {sr(s_n)}, 0")
    for i in range(144):
        e(f"v_accvgpr_write_b32 {ar(i)}, 0")

    XFS = [SB, SB + 12]
    s_nxt = 77
    LA = 4

    def calc_nxt():
        e(f"s_add_u32 {sr(s_nxt)}, {sr(s_cur)}, 24576")
        e(f"s_cmp_eq_u32 {sr(s_nxt)}, 147456")
        e(f"s_cselect_b32 {sr(s_nxt)}, 0, {sr(s_nxt)}")

    def q_groups(par):
        groups = []
        for dt in range(12):
            imm = 128 * (dt >> 2)
            reads = [(0, 2, "ds_read_b64_tr_b16 {dst}, " + f"{vr(VAC+(dt&3))} offset:{imm}"),
                     (2, 2, "ds_read_b64_tr_b16 {dst}, " + f"{vr(VAC+(dt&3))} offset:{imm+1536}")]
            mf = []
            for qt in range(3):
                a = (dt * 3 + qt) * 4
                mf.append(lambda b, a=a, qt=qt: f"v_mfma_f32_16x16x32_bf16 {ar(a,4)}, {vr(b,4)}, {vr(XFS[par]+4*qt,4)}, {ar(a,4)}")
            groups.append((reads, mf))
        return groups

    def q_addr(sbase, par):
        ins = [f"v_add_u32 {vr(KAC)}, {sr(sbase)}, {vr(XAB)}",
               f"s_add_u32 s78, {sr(sbase)}, 12288"]
        for i in range(4):
            ins.append(f"v_add_u32 {vr(VAC+i)}, s78, {vr(WAB+i)}")
        for qt in range(3):
            ins.append(f"ds_read_b128 {vr(XFS[par]+4*qt,4)}, {vr(KAC)} offset:{1024*qt}")
        return ins

    def q_body(par, issue, first=False, last=False):
        e("s_waitcnt vmcnt(18)")
        e("s_barrier")
        calc_nxt()
        if first:
            for ins in q_addr(s_cur, par):
                e(ins)
        ms = mfma_stream(q_groups(par), BUFS, LA, primed=not first,
                         next_groups=None if last else q_groups(1 - par),
                         addr_update=None if last else q_addr(s_nxt, 1 - par))
        merge(e, ms, issue, 0, 24)
        e(f"s_mov_b32 {sr(s_cur)}, {sr(s_nxt)}")

    stamp()
    q_body(0, issue_xw(), first=True)
    q_body(1, issue_xw())
    e.label("L_k1_q1")
    q_body(0, issue_xw())
    q_body(1, issue_xw())
    e(f"s_add_u32 {sr(s_n)}, {sr(s_n)}, 1")
    e(f"s_cmp_lt_u32 {sr(s_n)}, 6")
    e("s_cbranch_scc1 L_k1_q1")
    q_body(0, issue_xw())
    q_body(1, issue_kk())
    q_body(0, issue_vk())
    q_body(1, issue_vk())
    q_body(0, issue_vk())
    q_body(1, issue_vk(), last=True)

    stamp()
    e("s_nop 7")
    for Gd in range(6):
        for qt in range(3):
            qa = QF + (Gd * 3 + qt) * 4
            for half in range(2):
                a = ((2 * Gd + half) * 3 + qt) * 4
                for r in range(4):
                    e(f"v_accvgpr_read_b32 {vr(T+4*half+r)}, {ar(a+r)}")
            e(f"v_cvt_pk_bf16_f32 {vr(qa)}, {vr(T)}, {vr(T+1)}")
            e(f"v_cvt_pk_bf16_f32 {vr(qa+1)}, {vr(T+2)}, {vr(T+3)}")
            e(f"v_cvt_pk_bf16_f32 {vr(qa+2)}, {vr(T+4)}, {vr(T+5)}")
            e(f"v_cvt_pk_bf16_f32 {vr(qa+3)}, {vr(T+6)}, {vr(T+7)}")
            e("s_nop 1")
            e(f"v_permlane32_swap_b32 {vr(qa)}, {vr(qa+2)}")
            e(f"v_permlane32_swap_b32 {vr(qa+1)}, {vr(qa+3)}")
            e("s_nop 1")
            e(f"v_permlane16_swap_b32 {vr(qa)}, {vr(qa+2)}")
            e(f"v_permlane16_swap_b32 {vr(qa+1)}, {vr(qa+3)}")
    for i in range(144):
        e(f"v_accvgpr_write_b32 {ar(i)}, 0")
    for qt in range(3):
        e(f"v_mov_b32 {vr(MR+qt)}, 0xff800000")
        e(f"v_mov_b32 {vr(MTHR+qt)}, 0xff800000")
        e(f"v_mov_b32 {vr(MC+qt)}, 0")
        e(f"v_mov_b32 {vr(LS+qt)}, 0")
        e(f"v_mov_b32 {vr(AL+qt)}, 1.0")

    def qk_groups(sbuf, kaddr, koff):
        groups = []
        for kt in range(2):
            for t in range(6):
                imm = 128 * (t >> 1) + 6144 * kt + koff
                reads = [(0, 4, "ds_read_b128 {dst}, " + f"{vr(kaddr+(t&1))} offset:{imm}")]
                mf = []
                for qt in range(3):
                    d = SB + 24 * sbuf + (kt * 3 + qt) * 4
                    c = "0" if t == 0 else vr(d, 4)
                    mf.append(lambda b, d=d, c=c, t=t, qt=qt:
                              f"v_mfma_f32_16x16x32_bf16 {vr(d,4)}, {vr(b,4)}, {vr(QF+(t*3+qt)*4,4)}, {c}")
                groups.append((reads, mf))
        return groups

    def pv_groups(pbuf):
        groups = []
        for dt in range(12):
            imm = 128 * (dt >> 2)
            reads = [(0, 2, "ds_read_b64_tr_b16 {dst}, " + f"{vr(VAC+(dt&3))} offset:{imm}"),
                     (2, 2, "ds_read_b64_tr_b16 {dst}, " + f"{vr(VAC+(dt&3))} offset:{imm+6144}")]
            mf = []
            for qt in range(3):
                a = (dt * 3 + qt) * 4
                p = PB + 12 * pbuf + 4 * qt
                mf.append(lambda b, a=a, p=p: f"v_mfma_f32_16x16x32_bf16 {ar(a,4)}, {vr(b,4)}, {vr(p,4)}, {ar(a,4)}")
            groups.append((reads, mf))
        return groups

    slow_blocks = []

    def sm_list(buf):
        lab = e.newlabel("k1_sm")
        ins = []
        MX = T

        def sreg(qt, i):
            return SB + 24 * buf + ((i >> 2) * 3 + qt) * 4 + (i & 3)
        for qt in range(3):
            ins.append(f"v_max3_f32 {vr(MX+qt)}, {vr(sreg(qt,0))}, {vr(sreg(qt,1))}, {vr(sreg(qt,2))}")
            ins.append(f"v_max3_f32 {vr(MX+qt)}, {vr(MX+qt)}, {vr(sreg(qt,3))}, {vr(sreg(qt,4))}")
            ins.append(f"v_max3_f32 {vr(MX+qt)}, {vr(MX+qt)}, {vr(sreg(qt,5))}, {vr(sreg(qt,6))}")
            ins.append(f"v_max_f32 {vr(MX+qt)}, {vr(MX+qt)}, {vr(sreg(qt,7))}")
        for qt in range(3):
            ins.append(f"v_cmp_gt_f32 {sr(sF+2*qt,2)}, {vr(MX+qt)}, {vr(MTHR+qt)}")
        ins.append(f"s_or_b64 {sr(sF,2)}, {sr(sF,2)}, {sr(sF+2,2)}")
        ins.append(f"s_or_b64 {sr(sF,2)}, {sr(sF,2)}, {sr(sF+4,2)}")
        ins.append(f"s_cbranch_scc1 {lab}_slow")
        ins.append(f"{lab}_ret:")
        for qt in range(3):
            for i in range(8):
                ins.append(f"v_fma_f32 {vr(sreg(qt,i))}, {vr(sreg(qt,i))}, {sr(s_c)}, -{vr(MC+qt)}")
        for qt in range(3):
            for i in range(8):
                ins.append(f"v_exp_f32 {vr(sreg(qt,i))}, {vr(sreg(qt,i))}")
        for qt in range(3):
            ins.append(f"v_add_f32 {vr(MX+3+qt)}, {vr(sreg(qt,0))}, {vr(sreg(qt,1))}")
        for i in range(2, 8):
            for qt in range(3):
                ins.append(f"v_add_f32 {vr(MX+3+qt)}, {vr(MX+3+qt)}, {vr(sreg(qt,i))}")
        for qt in range(3):
            for i in range(4):
                ins.append(f"v_cvt_pk_bf16_f32 {vr(PB+12*buf+4*qt+i)}, {vr(sreg(qt,2*i))}, {vr(sreg(qt,2*i+1))}")
        for qt in range(3):
            ins.append(f"v_add_f32 {vr(LS+qt)}, {vr(LS+qt)}, {vr(MX+3+qt)}")
        sb = [f"{lab}_slow:"]
        tt = T + 6
        for qt in range(3):
            sb.append(f"v_mov_b32 {vr(tt)}, {vr(MX+qt)}")
            sb.append("s_nop 1")
            sb.append(f"v_permlane32_swap_b32 {vr(MX+qt)}, {vr(tt)}")
            sb.append(f"v_max_f32 {vr(MX+qt)}, {vr(MX+qt)}, {vr(tt)}")
            sb.append(f"v_mov_b32 {vr(tt)}, {vr(MX+qt)}")
            sb.append("s_nop 1")
            sb.append(f"v_permlane16_swap_b32 {vr(MX+qt)}, {vr(tt)}")
            sb.append(f"v_max_f32 {vr(MX+qt)}, {vr(MX+qt)}, {vr(tt)}")
            sb.append(f"v_max_f32 {vr(MX+qt)}, {vr(MX+qt)}, {vr(MR+qt)}")
            sb.append(f"v_sub_f32 {vr(tt)}, {vr(MR+qt)}, {vr(MX+qt)}")
            sb.append(f"v_mul_f32 {vr(tt)}, {sr(s_c)}, {vr(tt)}")
            sb.append(f"v_exp_f32 {vr(AL+qt)}, {vr(tt)}")
            sb.append(f"v_mov_b32 {vr(MR+qt)}, {vr(MX+qt)}")
            sb.append(f"v_add_f32 {vr(MTHR+qt)}, {sr(s_thr)}, {vr(MX+qt)}")
            sb.append(f"v_mul_f32 {vr(MC+qt)}, {sr(s_c)}, {vr(MX+qt)}")
            sb.append(f"v_mul_f32 {vr(LS+qt)}, {vr(LS+qt)}, {vr(AL+qt)}")
        sb.append(f"s_mov_b32 {sr(s_flag)}, 1")
        sb.append(f"s_branch {lab}_ret")
        slow_blocks.append(sb)
        return ins

    def rescale_check():
        lab = e.newlabel("k1_rs")
        e(f"s_cmp_eq_u32 {sr(s_flag)}, 0")
        e(f"s_cbranch_scc1 {lab}_skip")
        e("s_nop 7")
        for base in range(0, 144, 8):
            for i in range(8):
                e(f"v_accvgpr_read_b32 {vr(T+i)}, {ar(base+i)}")
            for i in range(8):
                qt = ((base + i) // 4) % 3
                e(f"v_mul_f32 {vr(T+i)}, {vr(T+i)}, {vr(AL+qt)}")
            for i in range(8):
                e(f"v_accvgpr_write_b32 {ar(base+i)}, {vr(T+i)}")
        e(f"s_mov_b32 {sr(s_flag)}, 0")
        e("s_nop 1")
        e.label(f"{lab}_skip")

    def v_addr(sbase):
        return [f"v_add_u32 {vr(VAC+i)}, {sr(sbase)}, {vr(VAB+i)}" for i in range(4)]

    e("s_waitcnt vmcnt(18)")
    e("s_barrier")
    calc_nxt()
    for i in range(2):
        e(f"v_add_u32 {vr(KAC+i)}, {sr(s_cur)}, {vr(KAB+i)}")
    g0 = qk_groups(0, KAC, 0)
    g1 = qk_groups(1, KAC, 12288)
    ms = mfma_stream(g0 + g1, BUFS, LA, next_groups=pv_groups(0), addr_update=v_addr(s_nxt))
    nm0 = 36 + 7
    side0 = issue_vk()
    cnt = 0
    cut = None
    for idx, (k, t) in enumerate(ms):
        if k == 'm':
            cnt += 1
            if cnt == nm0:
                cut = idx + 1
                break
    merge(e, ms[:cut], side0, 0, 20)
    merge(e, ms[cut:], sm_list(0))
    e(f"s_mov_b32 {sr(s_flag)}, 0")
    e(f"s_mov_b32 {sr(s_cur)}, {sr(s_nxt)}")

    def a_body(j_par, do_qk, do_sm, last=False, iss="vk", pre=None):
        e("s_waitcnt vmcnt(18)")
        e("s_barrier")
        calc_nxt()
        if pre:
            for x in pre:
                e(x)
        if do_qk:
            e(f"s_add_u32 {sr(s_t0)}, {sr(s_cur)}, 12288")
            for i in range(2):
                e(f"v_add_u32 {vr(KAC+i)}, {sr(s_t0)}, {vr(KAB+i)}")
        groups = pv_groups(j_par)
        if do_qk:
            groups += qk_groups(j_par, KAC, 0)
        ms = mfma_stream(groups, BUFS, LA, primed=True,
                         next_groups=None if last else pv_groups(1 - j_par),
                         addr_update=None if last else v_addr(s_nxt))
        side = issue_vk() if iss == "vk" else issue_xw()
        if do_sm and "nosm" not in EXP:
            side = side + sm_list(1 - j_par)
        merge(e, ms, side)
        if do_sm:
            if not do_qk:
                e("s_nop 7")
            rescale_check()
        e(f"s_mov_b32 {sr(s_cur)}, {sr(s_nxt)}")

    switch = [f"s_mov_b32 {sr(s_xoff)}, 0", f"s_mov_b32 {sr(s_woff)}, 0",
              f"s_mov_b32 {sr(s_koff)}, 0", f"s_mov_b32 {sr(s_voff)}, 0",
              f"s_add_u32 {sr(sW)}, {sr(sW)}, 384", f"s_addc_u32 {sr(sW+1)}, {sr(sW+1)}, 0",
              f"s_sub_u32 {sr(sW+2)}, {sr(sW+2)}, 384",
              f"s_add_u32 {sr(sK)}, {sr(sK)}, 196608", f"s_addc_u32 {sr(sK+1)}, {sr(sK+1)}, 0",
              f"s_add_u32 {sr(sV)}, {sr(sV)}, 196608", f"s_addc_u32 {sr(sV+1)}, {sr(sV+1)}, 0",
              f"s_cmp_eq_u32 {sr(s_head)}, 0",
              f"s_cselect_b32 {sr(sW+2)}, {sr(sW+2)}, 0",
              f"s_cselect_b32 {sr(sX+2)}, {sr(sX+2)}, 0",
              f"s_cselect_b32 {sr(sK+2)}, {sr(sK+2)}, 0",
              f"s_cselect_b32 {sr(sV+2)}, {sr(sV+2)}, 0"]

    stamp()
    e(f"s_mov_b32 {sr(s_n)}, 0")
    e.label("L_k1_aloop")
    a_body(0, True, True)
    a_body(1, True, True)
    e(f"s_add_u32 {sr(s_n)}, {sr(s_n)}, 1")
    e(f"s_cmp_lt_u32 {sr(s_n)}, 5")
    e("s_cbranch_scc1 L_k1_aloop")
    a_body(0, True, True)
    a_body(1, True, True, iss="xw", pre=switch)
    a_body(0, True, True, iss="xw")
    a_body(1, True, True, iss="xw")
    a_body(0, False, True, iss="xw")
    a_body(1, False, False, last=True, iss="xw")

    stamp()
    tt = T + 8
    for qt in range(3):
        e(f"v_mov_b32 {vr(tt)}, {vr(LS+qt)}")
        e("s_nop 1")
        e(f"v_permlane32_swap_b32 {vr(LS+qt)}, {vr(tt)}")
        e(f"v_add_f32 {vr(LS+qt)}, {vr(LS+qt)}, {vr(tt)}")
        e(f"v_mov_b32 {vr(tt)}, {vr(LS+qt)}")
        e("s_nop 1")
        e(f"v_permlane16_swap_b32 {vr(LS+qt)}, {vr(tt)}")
        e(f"v_add_f32 {vr(LS+qt)}, {vr(LS+qt)}, {vr(tt)}")
        e(f"v_rcp_f32 {vr(LS+qt)}, {vr(LS+qt)}")
    e("s_nop 7")
    for qt in range(3):
        for Gd in range(6):
            qa = QF + (Gd * 3 + qt) * 4
            for half in range(2):
                a = ((2 * Gd + half) * 3 + qt) * 4
                for r in range(4):
                    e(f"v_accvgpr_read_b32 {vr(T+4*half+r)}, {ar(a+r)}")
            for i in range(8):
                e(f"v_mul_f32 {vr(T+i)}, {vr(T+i)}, {vr(LS+qt)}")
            for i in range(4):
                e(f"v_cvt_pk_bf16_f32 {vr(qa+i)}, {vr(T+2*i)}, {vr(T+2*i+1)}")
            e(f"s_movk_i32 s3, {Gd*2048}")
            e(f"buffer_store_dwordx4 {vr(qa,4)}, {vr(VOUT+qt)}, {sr(sO,4)}, s3 offen")
    for qt in range(3):
        e(f"v_add_u32 {vr(VOUT+qt)}, 12288, {vr(VOUT+qt)}")
    e(f"s_add_u32 {sr(s_head)}, {sr(s_head)}, 1")
    e(f"s_cmp_lt_u32 {sr(s_head)}, 2")
    e("s_cbranch_scc1 L_k1_head")
    e("s_waitcnt vmcnt(0)")
    stamp()
    if "stamp" in EXP:
        e("s_add_u32 s40, s36, 0xC800000")
        e("s_addc_u32 s41, s37, 0")
        e("s_mov_b32 s42, 0x100000")
        e("s_mov_b32 s43, 0x00020000")
        e("s_lshl_b32 s3, s2, 2")
        e(f"s_add_u32 s3, s3, {sr(s_w)}")
        e("s_lshl_b32 s3, s3, 6")
        e("v_mov_b32 v1, s3")
        for i in range(6):
            e(f"v_mov_b32 v2, s{88+2*i}")
            e(f"buffer_store_dword v2, v1, s[40:43], 0 offen offset:{4*i}")
        e("s_waitcnt vmcnt(0)")
    e.label("L_k1_end")
    e("s_endpgm")
    for sb in slow_blocks:
        for s in sb:
            if s.endswith(":"):
                e.label(s[:-1])
            else:
                e(s)


def gen_k2(e):
    ACC = 0
    FS = 8
    VOW = 56
    VOA = 57
    AB = 58
    BBs = 60
    AC = 61
    BC = 63
    VOP = 64
    T = 65
    sWO, sA, sP = 40, 44, 48
    s_blk, s_ks, s_rb, s_nc, s_w, s_wr, s_wc, s_mb, s_wooff, s_aoff, s_cur, s_nxt, s_n = range(60, 73)
    RING = 6
    STG = 24576
    NST = 48

    e.raw(".globl k2_kernel")
    e.raw(".p2align 8")
    e.raw(".type k2_kernel,@function")
    e.label("k2_kernel")
    e("s_cmp_ge_u32 s2, 240")
    e("s_cbranch_scc1 L_k2_end")
    e("s_load_dwordx2 s[16:17], s[0:1], 32")
    e("s_load_dwordx2 s[18:19], s[0:1], 72")
    e("s_load_dwordx2 s[36:37], s[0:1], 96")
    e("s_and_b32 s3, s2, 7")
    e(f"s_lshr_b32 {sr(s_blk)}, s3, 2")
    e(f"s_and_b32 {sr(s_ks)}, s3, 3")
    e("s_lshr_b32 s4, s2, 3")
    e("s_mul_i32 s5, s4, 52")
    e(f"s_lshr_b32 {sr(s_rb)}, s5, 8")
    e(f"s_mul_i32 s5, {sr(s_rb)}, 5")
    e(f"s_sub_u32 {sr(s_nc)}, s4, s5")
    e(f"v_lshrrev_b32 {vr(T)}, 6, v0")
    e("s_nop 0")
    e(f"v_readfirstlane_b32 {sr(s_w)}, {vr(T)}")
    e("s_waitcnt lgkmcnt(0)")
    e(f"s_lshr_b32 {sr(s_wr)}, {sr(s_w)}, 1")
    e(f"s_and_b32 {sr(s_wc)}, {sr(s_w)}, 1")
    e(f"s_cmp_eq_u32 {sr(s_blk)}, 0")
    e("s_cselect_b32 s4, s16, s18")
    e("s_cselect_b32 s5, s17, s19")
    e(f"s_mul_i32 s3, {sr(s_ks)}, {1536*1280}")
    e(f"s_lshl_b32 s6, {sr(s_nc)}, 8")
    e("s_add_u32 s3, s3, s6")
    e(f"s_add_u32 {sr(sWO)}, s4, s3")
    e(f"s_addc_u32 {sr(sWO+1)}, s5, 0")
    e(f"s_sub_u32 {sr(sWO+2)}, 7864320, s3")
    e(f"s_mov_b32 {sr(sWO+3)}, 0x00020000")
    e(f"s_mul_i32 s3, {sr(s_blk)}, 48")
    e(f"s_lshl_b32 s6, {sr(s_rb)}, 3")
    e("s_add_u32 s3, s3, s6")
    e("s_mul_i32 s3, s3, 393216")
    e(f"s_mul_i32 s6, {sr(s_ks)}, {96*1024}")
    e("s_add_u32 s3, s3, s6")
    e(f"s_add_u32 {sr(sA)}, s36, s3")
    e(f"s_addc_u32 {sr(sA+1)}, s37, 0")
    e(f"s_sub_u32 {sr(sA+2)}, {8*393216}, s6")
    e(f"s_mov_b32 {sr(sA+3)}, 0x00020000")
    e(f"s_mul_i32 s3, {sr(s_ks)}, 60")
    e(f"s_mul_i32 s6, {sr(s_blk)}, 30")
    e("s_add_u32 s3, s3, s6")
    e(f"s_mul_i32 s6, {sr(s_rb)}, 5")
    e("s_add_u32 s3, s3, s6")
    e(f"s_add_u32 s3, s3, {sr(s_nc)}")
    e("s_lshl_b32 s3, s3, 17")
    e(f"s_add_u32 s3, s3, {WS_P_OFF}")
    e(f"s_add_u32 {sr(sP)}, s36, s3")
    e(f"s_addc_u32 {sr(sP+1)}, s37, 0")
    e(f"s_mov_b32 {sr(sP+2)}, 131072")
    e(f"s_mov_b32 {sr(sP+3)}, 0x00020000")

    LANE, HH, GP, R, C = 1, 2, 3, 4, 5
    t0, t1, t2, t3 = T, T + 1, T + 2, T + 3
    e(f"v_and_b32 {vr(LANE)}, 63, v0")
    e(f"v_lshrrev_b32 {vr(HH)}, 5, {vr(LANE)}")
    e(f"v_bfe_u32 {vr(GP)}, {vr(LANE)}, 4, 1")
    e(f"v_bfe_u32 {vr(R)}, {vr(LANE)}, 2, 2")
    e(f"v_and_b32 {vr(C)}, 3, {vr(LANE)}")
    e(f"v_lshrrev_b32 {vr(t0)}, 4, {vr(LANE)}")
    e(f"v_and_b32 {vr(t1)}, 15, {vr(LANE)}")
    e(f"v_lshlrev_b32 {vr(t2)}, 2, {vr(t0)}")
    e(f"v_xor_b32 {vr(t1)}, {vr(t1)}, {vr(t2)}")
    e(f"v_lshlrev_b32 {vr(t1)}, 4, {vr(t1)}")
    e(f"v_mul_u32_u24 {vr(t0)}, 1280, {vr(t0)}")
    e(f"s_mul_i32 s3, {sr(s_w)}, {8*1280}")
    e(f"v_add3_u32 {vr(VOW)}, {vr(t0)}, {vr(t1)}, s3")
    e(f"s_mul_i32 s3, {sr(s_w)}, {2*393216}")
    e(f"v_lshlrev_b32 {vr(VOA)}, 4, {vr(LANE)}")
    e(f"v_add_u32 {vr(VOA)}, s3, {vr(VOA)}")
    e(f"v_lshlrev_b32 {vr(t0)}, 2, {vr(HH)}")
    e(f"v_add_u32 {vr(t0)}, {vr(t0)}, {vr(R)}")
    e(f"v_lshlrev_b32 {vr(t0)}, 8, {vr(t0)}")
    e(f"v_and_b32 {vr(t1)}, 1, {vr(C)}")
    e(f"v_lshlrev_b32 {vr(t1)}, 3, {vr(t1)}")
    e(f"v_add_u32 {vr(t0)}, {vr(t0)}, {vr(t1)}")
    e(f"v_lshlrev_b32 {vr(t2)}, 2, {vr(R)}")
    e(f"s_lshl_b32 s3, {sr(s_wc)}, 3")
    for nt in range(2):
        e(f"v_lshrrev_b32 {vr(t1)}, 1, {vr(C)}")
        e(f"v_lshl_add_u32 {vr(t1)}, {vr(GP)}, 1, {vr(t1)}")
        e(f"v_add3_u32 {vr(t1)}, {vr(t1)}, s3, {4*nt}")
        e(f"v_xor_b32 {vr(t1)}, {vr(t1)}, {vr(t2)}")
        e(f"v_lshlrev_b32 {vr(t1)}, 4, {vr(t1)}")
        e(f"v_add3_u32 {vr(AB+nt)}, {vr(t0)}, {vr(t1)}, 0")
        e(f"v_add_u32 {vr(AB+nt)}, 16384, {vr(AB+nt)}")
    e(f"s_lshl_b32 s3, {sr(s_wr)}, 13")
    e(f"v_lshlrev_b32 {vr(BBs)}, 4, {vr(LANE)}")
    e(f"v_add_u32 {vr(BBs)}, s3, {vr(BBs)}")
    e(f"s_lshl_b32 s3, {sr(s_w)}, 15")
    e(f"v_lshlrev_b32 {vr(VOP)}, 4, {vr(LANE)}")
    e(f"v_add_u32 {vr(VOP)}, s3, {vr(VOP)}")

    def issue():
        ins = []
        for i in range(4):
            ins.append(f"s_add_u32 m0, {sr(s_mb)}, {1024*i}")
            ins.append(f"s_add_u32 s3, {sr(s_aoff)}, {(i>>1)*393216 + (i&1)*1024}")
            ins.append(f"buffer_load_dwordx4 {vr(VOA)}, {sr(sA,4)}, s3 offen lds")
        for i in range(2):
            ins.append(f"s_add_u32 m0, s78, {1024*i}")
            ins.append(f"s_add_u32 s3, {sr(s_wooff)}, {i*4*1280}")
            ins.append(f"buffer_load_dwordx4 {vr(VOW)}, {sr(sWO,4)}, s3 offen lds")
        ins += [f"s_add_u32 {sr(s_aoff)}, {sr(s_aoff)}, 2048",
                f"s_add_u32 {sr(s_wooff)}, {sr(s_wooff)}, {32*1280}",
                f"s_add_u32 {sr(s_mb)}, {sr(s_mb)}, {STG}",
                f"s_cmp_ge_u32 {sr(s_mb)}, {RING*STG}",
                f"s_cselect_b32 {sr(s_mb)}, s76, {sr(s_mb)}",
                f"s_add_u32 s78, {sr(s_mb)}, s77"]
        return ins

    e(f"s_lshl_b32 s76, {sr(s_w)}, 12")
    e(f"s_lshl_b32 s77, {sr(s_w)}, 11")
    e("s_sub_u32 s77, 16384, s77")
    e(f"s_mov_b32 {sr(s_mb)}, s76")
    e(f"s_add_u32 s78, {sr(s_mb)}, s77")
    e(f"s_mov_b32 {sr(s_aoff)}, 0")
    e(f"s_mov_b32 {sr(s_wooff)}, 0")
    e(f"s_mov_b32 {sr(s_cur)}, 0")
    e(f"s_mov_b32 {sr(s_n)}, 0")
    for _ in range(RING - 1):
        for ins in issue():
            e(ins)
    for i in range(128):
        e(f"v_accvgpr_write_b32 {ar(ACC+i)}, 0")

    def reads(ks, fs):
        b = FS + 24 * fs
        r = []
        for nt in range(2):
            r.append(f"ds_read_b64_tr_b16 {vr(b+4*nt,2)}, {vr(AC+nt)} offset:{2048*ks}")
            r.append(f"ds_read_b64_tr_b16 {vr(b+4*nt+2,2)}, {vr(AC+nt)} offset:{2048*ks+4096}")
        for qt in range(4):
            r.append(f"ds_read_b128 {vr(b+8+4*qt,4)}, {vr(BC)} offset:{2048*qt+1024*ks}")
        return r

    def mfmas(fs):
        b = FS + 24 * fs
        m = []
        for qt in range(4):
            for nt in range(2):
                a = ACC + (qt * 2 + nt) * 16
                m.append(f"v_mfma_f32_32x32x16_bf16 {ar(a,16)}, {vr(b+4*nt,4)}, {vr(b+8+4*qt,4)}, {ar(a,16)}")
        return m

    def addr(sb):
        return [f"v_add_u32 {vr(AC)}, {sr(sb)}, {vr(AB)}", f"v_add_u32 {vr(AC+1)}, {sr(sb)}, {vr(AB+1)}",
                f"v_add_u32 {vr(BC)}, {sr(sb)}, {vr(BBs)}"]

    def inter(m, side):
        k = 0
        for i, x in enumerate(m):
            e(x)
            tgt = ((i + 1) * len(side) + len(m) - 1) // len(m)
            while k < tgt:
                e(side[k])
                k += 1

    def stage(first=False, last=False):
        e("s_waitcnt vmcnt(18)")
        e("s_barrier")
        e(f"s_add_u32 {sr(s_nxt)}, {sr(s_cur)}, {STG}")
        e(f"s_cmp_eq_u32 {sr(s_nxt)}, {RING*STG}")
        e(f"s_cselect_b32 {sr(s_nxt)}, 0, {sr(s_nxt)}")
        if first:
            for x in addr(s_cur) + reads(0, 0):
                e(x)
        e("s_waitcnt lgkmcnt(0)")
        iss = issue()
        h = len(iss) // 2
        inter(mfmas(0), reads(1, 1) + iss[:h])
        e("s_waitcnt lgkmcnt(0)")
        inter(mfmas(1), ([] if last else addr(s_nxt) + reads(0, 0)) + iss[h:])
        e(f"s_mov_b32 {sr(s_cur)}, {sr(s_nxt)}")

    stage(first=True)
    e.label("L_k2_loop")
    stage()
    e(f"s_add_u32 {sr(s_n)}, {sr(s_n)}, 1")
    e(f"s_cmp_lt_u32 {sr(s_n)}, {NST-2}")
    e("s_cbranch_scc1 L_k2_loop")
    stage(last=True)
    e("s_nop 15")
    for i in range(32):
        e(f"s_movk_i32 s3, {1024*i}")
        e(f"buffer_store_dwordx4 {ar(ACC+4*i,4)}, {vr(VOP)}, {sr(sP,4)}, s3 offen")
    e("s_waitcnt vmcnt(0)")
    e.label("L_k2_end")
    e("s_endpgm")


def gen_k3(e):
    e.raw(".globl k3_kernel")
    e.raw(".p2align 8")
    e.raw(".type k3_kernel,@function")
    e.label("k3_kernel")
    e("s_cmp_ge_u32 s2, 1920")
    e("s_cbranch_scc1 L_k3_end")
    e("s_load_dwordx2 s[4:5], s[0:1], 80")
    e("s_load_dwordx2 s[6:7], s[0:1], 96")
    e("s_waitcnt lgkmcnt(0)")
    e("s_mov_b32 s8, s4")
    e("s_mov_b32 s9, s5")
    e("s_mov_b32 s10, 3932160")
    e("s_mov_b32 s11, 0x00020000")
    e(f"s_add_u32 s12, s6, {WS_P_OFF}")
    e("s_addc_u32 s13, s7, 0")
    e("s_mov_b32 s14, 31457280")
    e("s_mov_b32 s15, 0x00020000")
    e("s_lshl_b32 s16, s2, 12")
    e("v_lshlrev_b32 v2, 4, v0")
    e("v_add_u32 v2, s16, v2")
    for ks in range(4):
        e(f"s_mov_b32 s19, {ks*60*131072}")
        e(f"buffer_load_dwordx4 v[{8+4*ks}:{11+4*ks}], v2, s[12:15], s19 offen")
    e("s_lshr_b32 s17, s2, 5")
    e("s_cmp_ge_u32 s17, 30")
    e("s_cselect_b32 s18, 1, 0")
    e("s_mul_i32 s20, s18, 30")
    e("s_sub_u32 s17, s17, s20")
    e("s_mul_i32 s20, s17, 52")
    e("s_lshr_b32 s20, s20, 8")
    e("s_mul_i32 s21, s20, 5")
    e("s_sub_u32 s21, s17, s21")
    e("s_bfe_u32 s22, s2, 0x20003")
    e("s_and_b32 s23, s2, 7")
    e("s_lshr_b32 s24, s23, 1")
    e("s_and_b32 s25, s23, 1")
    e("s_lshr_b32 s26, s22, 1")
    e("s_and_b32 s27, s22, 1")
    e("s_lshl_b32 s28, s20, 8")
    e("s_lshl_b32 s29, s26, 7")
    e("s_add_u32 s28, s28, s29")
    e("s_lshl_b32 s29, s24, 5")
    e("s_add_u32 s28, s28, s29")
    e("s_mul_i32 s30, s18, 640")
    e("s_lshl_b32 s29, s21, 7")
    e("s_add_u32 s30, s30, s29")
    e("s_lshl_b32 s29, s27, 6")
    e("s_add_u32 s30, s30, s29")
    e("s_lshl_b32 s29, s25, 5")
    e("s_add_u32 s30, s30, s29")
    e("v_and_b32 v3, 31, v0")
    e("v_add_u32 v3, s28, v3")
    e("v_mul_u32_u24 v3, 2560, v3")
    e("v_lshrrev_b32 v4, 6, v0")
    e("v_lshlrev_b32 v4, 3, v4")
    e("v_bfe_u32 v5, v0, 5, 1")
    e("v_lshl_add_u32 v4, v5, 2, v4")
    e("v_add_u32 v4, s30, v4")
    e("v_lshl_add_u32 v3, v4, 1, v3")
    e("s_waitcnt vmcnt(0)")
    for i in range(4):
        e(f"v_add_f32 v{8+i}, v{8+i}, v{12+i}")
        e(f"v_add_f32 v{16+i}, v{16+i}, v{20+i}")
    for i in range(4):
        e(f"v_add_f32 v{8+i}, v{8+i}, v{16+i}")
    e("v_cvt_pk_bf16_f32 v24, v8, v9")
    e("v_cvt_pk_bf16_f32 v25, v10, v11")
    e("buffer_store_dwordx2 v[24:25], v3, s[8:11], 0 offen")
    e("s_waitcnt vmcnt(0)")
    e.label("L_k3_end")
    e("s_endpgm")


def desc2(name, nfv, acc, sgpr=96):
    return f""".amdhsa_kernel {name}
  .amdhsa_next_free_vgpr {nfv}
  .amdhsa_next_free_sgpr {sgpr}
  .amdhsa_accum_offset {acc}
  .amdhsa_group_segment_fixed_size 0
  .amdhsa_kernarg_size 104
  .amdhsa_user_sgpr_count 2
  .amdhsa_user_sgpr_kernarg_segment_ptr 1
  .amdhsa_system_sgpr_workgroup_id_x 1
.end_amdhsa_kernel
"""


def main():
    e = Emitter()
    out = HEADER
    out += "; @launch kernel=k1_kernel grid=(256,1,1) block=(256,1,1) lds=147456\n"
    out += "; @launch kernel=k2_kernel grid=(240,1,1) block=(256,1,1) lds=147456\n"
    out += "; @launch kernel=k3_kernel grid=(1920,1,1) block=(256,1,1) lds=0\n"
    out += '.amdgcn_target "amdgcn-amd-amdhsa--gfx950"\n.text\n'
    gen_k1(e)
    gen_k2(e)
    gen_k3(e)
    out += e.text()
    out += '.section .rodata,"a"\n.p2align 6\n'
    out += desc2("k1_kernel", 400, 256, 102)
    out += ".p2align 6\n" + desc2("k2_kernel", 72+128, 72)
    out += ".p2align 6\n" + desc("k3_kernel", 32)
    path = sys.argv[1] if len(sys.argv) > 1 else f"cdna_kernels/{NAME}.s"
    open(path, "w").write(out)


if __name__ == "__main__":
    main()
```

```python
import math
import struct
import sys
import os
EXP = os.environ.get("EXP", "")

from gen import HEADER, NAME, WS_P_OFF, Emitter, vr, sr, desc


def ar(a, n=1):
    return f"a{a}" if n == 1 else f"a[{a}:{a+n-1}]"


def f32bits(x):
    return struct.unpack("<I", struct.pack("<f", x))[0]


def mfma_stream(groups, bufs, lookahead, primed=False, next_groups=None, addr_update=None, pre_out=0):
    out = []
    nb = len(bufs)
    assert lookahead < nb
    allg = list(groups) + (list(next_groups[:lookahead]) if next_groups else [])
    if next_groups:
        assert len(groups) % nb == 0
    issued = 0
    last = {}

    def issue(o, emit=True):
        nonlocal issued
        b = bufs[o % nb]
        if o == len(groups) and emit and addr_update:
            for t in addr_update:
                out.append(('i', t))
                if t.startswith("ds_read"):
                    issued += 1
        for (roff, rn, fmt) in allg[o][0]:
            if emit:
                out.append(('i', fmt.format(dst=vr(b + roff, rn))))
            issued += 1
        last[o] = issued
    nxt = 0
    while nxt < min(lookahead, len(allg)):
        issue(nxt, emit=not primed)
        nxt += 1
    for o, (reads, mf) in enumerate(groups):
        if nxt < len(allg):
            issue(nxt)
            nxt += 1
        n = issued - last[o]
        assert n <= 15, n
        out.append(('i', f"s_waitcnt lgkmcnt({n})"))
        for fn in mf:
            out.append(('m', fn(bufs[o % nb])))
    return out


def merge(e, ms, side, start=0, end=None):
    nm = sum(1 for k, _ in ms if k == 'm')
    if end is None:
        end = nm
    span = max(1, end - start)
    ns = len(side)
    mi = 0
    si = 0
    for k, t in ms:
        e(t)
        if k == 'm':
            if mi >= start:
                tgt = min(ns, ((mi - start + 1) * ns + span - 1) // span)
                while si < tgt or (si < ns and side[si].endswith(":")):
                    s = side[si]
                    if s.endswith(":"):
                        e.label(s[:-1])
                    else:
                        e(s)
                    si += 1
            mi += 1
    while si < ns:
        s = side[si]
        if s.endswith(":"):
            e.label(s[:-1])
        else:
            e(s)
        si += 1


def gen_k1(e):
    QF = 0
    SB = 72
    PB = 120
    BUFS = [144 + 4 * i for i in range(6)]
    NEGM = 168
    KAB, VAB, KAC, VAC = 180, 182, 186, 188
    WAB, XAB = 192, 196
    VOKV, VOW, VOX = 197, 200, 203
    LS, AL = 206, 209
    T = 212
    VOUT = 224
    EB = 228

    sX, sW, sK, sV, sO = 40, 44, 48, 52, 56
    s_n, s_cur, s_iss, s_xoff, s_woff, s_koff, s_voff, s_wlds, s_t0, s_t1, s_c, s_thr, s_flag = range(60, 73)
    s_b, s_h, s_blk, s_w = 73, 74, 75, 76
    sF = 80

    c2 = (192 ** -0.5) * math.log2(math.e)
    stamp_n = [0]

    def stamp():
        if "stamp" in EXP:
            e(f"s_memtime s[{88+2*stamp_n[0]}:{89+2*stamp_n[0]}]")
            e("s_waitcnt lgkmcnt(0)")
            stamp_n[0] += 1

    e.raw(".globl k1_kernel")
    e.raw(".p2align 8")
    e.raw(".type k1_kernel,@function")
    e.label("k1_kernel")
    e("s_cmp_ge_u32 s2, 256")
    e("s_cbranch_scc1 L_k1_end")
    stamp()
    e("s_load_dwordx16 s[16:31], s[0:1], 0")
    e("s_load_dwordx4 s[32:35], s[0:1], 64")
    e("s_load_dwordx2 s[36:37], s[0:1], 96")
    e("s_and_b32 s3, s2, 7")
    e("s_lshr_b32 s4, s2, 3")
    e(f"s_and_b32 {sr(s_b)}, s4, 7")
    e("s_lshr_b32 s4, s4, 3")
    e("s_lshl_b32 s4, s4, 1")
    e("s_lshl_b32 s3, s3, 3")
    e("s_add_u32 s3, s3, s4")
    e(f"s_lshr_b32 {sr(s_blk)}, s3, 5")
    e(f"s_and_b32 {sr(s_h)}, s3, 31")
    e(f"v_lshrrev_b32 {vr(T)}, 6, v0")
    e("s_nop 0")
    e(f"v_readfirstlane_b32 {sr(s_w)}, {vr(T)}")
    e("s_waitcnt lgkmcnt(0)")
    e(f"s_cmp_eq_u32 {sr(s_blk)}, 0")
    for i, (a, b) in enumerate(((16, 26), (17, 27), (18, 28), (19, 29), (20, 30), (21, 31), (22, 32), (23, 33))):
        e(f"s_cselect_b32 s{4+i}, s{a}, s{b}")
    e(f"s_mul_i32 s3, {sr(s_b)}, 245760")
    e(f"s_add_u32 {sr(sX)}, s4, s3")
    e(f"s_addc_u32 {sr(sX+1)}, s5, 0")
    e(f"s_mov_b32 {sr(sX+2)}, 245760")
    e(f"s_mov_b32 {sr(sX+3)}, 0x00020000")
    e(f"s_mul_i32 s3, {sr(s_h)}, 384")
    e(f"s_add_u32 {sr(sW)}, s10, s3")
    e(f"s_addc_u32 {sr(sW+1)}, s11, 0")
    e(f"s_sub_u32 {sr(sW+2)}, 7864320, s3")
    e(f"s_mov_b32 {sr(sW+3)}, 0x00020000")
    e(f"s_lshl_b32 s3, {sr(s_b)}, 5")
    e(f"s_add_u32 s3, s3, {sr(s_h)}")
    e("s_mul_i32 s3, s3, 196608")
    e(f"s_add_u32 {sr(sK)}, s6, s3")
    e(f"s_addc_u32 {sr(sK+1)}, s7, 0")
    e(f"s_mov_b32 {sr(sK+2)}, 196608")
    e(f"s_mov_b32 {sr(sK+3)}, 0x00020000")
    e(f"s_add_u32 {sr(sV)}, s8, s3")
    e(f"s_addc_u32 {sr(sV+1)}, s9, 0")
    e(f"s_mov_b32 {sr(sV+2)}, 196608")
    e(f"s_mov_b32 {sr(sV+3)}, 0x00020000")
    e(f"s_lshl_b32 s3, {sr(s_blk)}, 3")
    e(f"s_add_u32 s3, s3, {sr(s_b)}")
    e("s_mul_i32 s3, s3, 2359296")
    e(f"s_add_u32 {sr(sO)}, s36, s3")
    e(f"s_addc_u32 {sr(sO+1)}, s37, 0")
    e(f"s_mov_b32 {sr(sO+2)}, 2359296")
    e(f"s_mov_b32 {sr(sO+3)}, 0x00020000")
    e(f"s_mul_i32 {sr(s_wlds)}, {sr(s_w)}, 3072")

    LANE, G, L15, R, C = 1, 2, 3, 4, 5
    t0, t1, t2, t3, t4 = T, T + 1, T + 2, T + 3, T + 4
    e(f"v_and_b32 {vr(LANE)}, 63, v0")
    e(f"v_lshrrev_b32 {vr(G)}, 4, {vr(LANE)}")
    e(f"v_and_b32 {vr(L15)}, 15, {vr(LANE)}")
    e(f"v_bfe_u32 {vr(R)}, {vr(LANE)}, 2, 2")
    e(f"v_and_b32 {vr(C)}, 3, {vr(LANE)}")
    e("s_movk_i32 s3, 2731")
    e(f"s_lshl_b32 s4, {sr(s_w)}, 3")
    for i in range(3):
        e(f"v_add_u32 {vr(t0)}, {64*i}, {vr(LANE)}")
        e(f"v_mul_lo_u32 {vr(t1)}, {vr(t0)}, s3")
        e(f"v_lshrrev_b32 {vr(t1)}, 16, {vr(t1)}")
        e(f"v_mul_u32_u24 {vr(t2)}, 24, {vr(t1)}")
        e(f"v_sub_u32 {vr(t0)}, {vr(t0)}, {vr(t2)}")
        e(f"v_add_u32 {vr(t1)}, s4, {vr(t1)}")
        e(f"v_and_b32 {vr(t2)}, 6, {vr(t1)}")
        e(f"v_xor_b32 {vr(t2)}, {vr(t0)}, {vr(t2)}")
        e(f"v_lshlrev_b32 {vr(t2)}, 4, {vr(t2)}")
        e(f"v_mul_u32_u24 {vr(t3)}, 384, {vr(t1)}")
        e(f"v_add_u32 {vr(VOKV+i)}, {vr(t2)}, {vr(t3)}")
        e(f"v_and_b32 {vr(t2)}, 2, {vr(t1)}")
        e(f"v_bfe_u32 {vr(t3)}, {vr(t1)}, 3, 1")
        e(f"v_lshlrev_b32 {vr(t3)}, 2, {vr(t3)}")
        e(f"v_or_b32 {vr(t2)}, {vr(t2)}, {vr(t3)}")
        e(f"v_xor_b32 {vr(t2)}, {vr(t0)}, {vr(t2)}")
        e(f"v_lshlrev_b32 {vr(t2)}, 4, {vr(t2)}")
        e(f"v_mul_u32_u24 {vr(t3)}, 12288, {vr(t1)}")
        e(f"v_add_u32 {vr(VOW+i)}, {vr(t2)}, {vr(t3)}")
    e(f"v_lshrrev_b32 {vr(t0)}, 2, {vr(LANE)}")
    e(f"v_lshrrev_b32 {vr(t1)}, 1, {vr(t0)}")
    e(f"v_and_b32 {vr(t1)}, 2, {vr(t1)}")
    e(f"v_xor_b32 {vr(t1)}, {vr(C)}, {vr(t1)}")
    e(f"v_lshlrev_b32 {vr(t1)}, 4, {vr(t1)}")
    e(f"v_mul_u32_u24 {vr(t0)}, 1280, {vr(t0)}")
    e(f"s_mul_i32 s4, {sr(s_w)}, {48*1280}")
    e(f"v_add3_u32 {vr(VOX)}, {vr(t0)}, {vr(t1)}, s4")
    e(f"v_add_u32 {vr(VOX+1)}, {16*1280}, {vr(VOX)}")
    e(f"v_add_u32 {vr(VOX+2)}, {32*1280}, {vr(VOX)}")
    e(f"v_and_b32 {vr(t2)}, 6, {vr(L15)}")
    e(f"v_mul_u32_u24 {vr(t3)}, 384, {vr(L15)}")
    for tp in range(2):
        e(f"v_add_u32 {vr(t0)}, {4*tp}, {vr(G)}")
        e(f"v_xor_b32 {vr(t0)}, {vr(t0)}, {vr(t2)}")
        e(f"v_lshlrev_b32 {vr(t0)}, 4, {vr(t0)}")
        e(f"v_add3_u32 {vr(KAB+tp)}, {vr(t0)}, {vr(t3)}, 0")
    e(f"v_lshlrev_b32 {vr(t4)}, 2, {vr(G)}")
    e(f"v_add_u32 {vr(t4)}, {vr(t4)}, {vr(R)}")
    e(f"v_and_b32 {vr(t2)}, 6, {vr(t4)}")
    e(f"v_mul_u32_u24 {vr(t3)}, 384, {vr(t4)}")
    e(f"v_and_b32 {vr(t1)}, 1, {vr(C)}")
    e(f"v_lshlrev_b32 {vr(t1)}, 3, {vr(t1)}")
    e(f"v_add_u32 {vr(t3)}, {vr(t3)}, {vr(t1)}")
    for d4 in range(4):
        e(f"v_lshrrev_b32 {vr(t0)}, 1, {vr(C)}")
        e(f"v_add_u32 {vr(t0)}, {2*d4}, {vr(t0)}")
        e(f"v_xor_b32 {vr(t0)}, {vr(t0)}, {vr(t2)}")
        e(f"v_lshlrev_b32 {vr(t0)}, 4, {vr(t0)}")
        e(f"v_add_u32 {vr(VAB+d4)}, {vr(t0)}, {vr(t3)}")
    e(f"v_lshlrev_b32 {vr(t4)}, 3, {vr(G)}")
    e(f"v_add_u32 {vr(t4)}, {vr(t4)}, {vr(R)}")
    e(f"v_and_b32 {vr(t2)}, 2, {vr(R)}")
    e(f"v_and_b32 {vr(t0)}, 1, {vr(G)}")
    e(f"v_lshlrev_b32 {vr(t0)}, 2, {vr(t0)}")
    e(f"v_or_b32 {vr(t2)}, {vr(t2)}, {vr(t0)}")
    e(f"v_mul_u32_u24 {vr(t3)}, 384, {vr(t4)}")
    e(f"v_add_u32 {vr(t3)}, {vr(t3)}, {vr(t1)}")
    for d4 in range(4):
        e(f"v_lshrrev_b32 {vr(t0)}, 1, {vr(C)}")
        e(f"v_add_u32 {vr(t0)}, {2*d4}, {vr(t0)}")
        e(f"v_xor_b32 {vr(t0)}, {vr(t0)}, {vr(t2)}")
        e(f"v_lshlrev_b32 {vr(t0)}, 4, {vr(t0)}")
        e(f"v_add3_u32 {vr(WAB+d4)}, {vr(t0)}, {vr(t3)}, 0")
    e(f"v_lshrrev_b32 {vr(t0)}, 1, {vr(L15)}")
    e(f"v_and_b32 {vr(t0)}, 2, {vr(t0)}")
    e(f"v_xor_b32 {vr(t0)}, {vr(G)}, {vr(t0)}")
    e(f"v_lshlrev_b32 {vr(t0)}, 4, {vr(t0)}")
    e(f"v_lshlrev_b32 {vr(t1)}, 6, {vr(L15)}")
    e(f"s_mul_i32 s4, {sr(s_w)}, {48*64}")
    e(f"v_add3_u32 {vr(XAB)}, {vr(t0)}, {vr(t1)}, s4")
    e(f"s_mul_i32 s3, {sr(s_w)}, 48")
    e(f"s_mul_i32 s4, {sr(s_h)}, 12288")
    for qt in range(3):
        e(f"v_add3_u32 {vr(t0)}, {vr(L15)}, s3, {16*qt}")
        e(f"v_lshrrev_b32 {vr(t1)}, 5, {vr(t0)}")
        e(f"v_mul_u32_u24 {vr(t1)}, 0x60000, {vr(t1)}")
        e(f"v_and_b32 {vr(t0)}, 31, {vr(t0)}")
        e(f"v_and_b32 {vr(t2)}, 1, {vr(G)}")
        e(f"v_lshl_add_u32 {vr(t0)}, {vr(t2)}, 5, {vr(t0)}")
        e(f"v_lshlrev_b32 {vr(t0)}, 4, {vr(t0)}")
        e(f"v_lshrrev_b32 {vr(t2)}, 1, {vr(G)}")
        e(f"v_lshlrev_b32 {vr(t2)}, 10, {vr(t2)}")
        e(f"v_add3_u32 {vr(t0)}, {vr(t0)}, {vr(t1)}, {vr(t2)}")
        e(f"v_add_u32 {vr(VOUT+qt)}, s4, {vr(t0)}")

    s_mb = 79

    def dma(srd, vo_list, soff_s, unit_add):
        ins = []
        for i in range(3):
            ins.append(f"s_add_u32 m0, {sr(s_mb)}, {unit_add + 1024*i}")
            ins.append("s_nop 0")
            if "nodma" not in EXP:
                ins.append(f"buffer_load_dwordx4 {vr(vo_list[i])}, {sr(srd,4)}, {sr(soff_s)} offen lds")
        return ins

    def adv_iss():
        return [f"s_add_u32 {sr(s_mb)}, {sr(s_mb)}, 24576",
                f"s_cmp_ge_u32 {sr(s_mb)}, 147456",
                f"s_cselect_b32 {sr(s_mb)}, {sr(s_wlds)}, {sr(s_mb)}"]

    kvo = [VOKV, VOKV + 1, VOKV + 2]

    def issue_xw():
        ins = dma(sX, [VOX, VOX + 1, VOX + 2], s_xoff, 0) + dma(sW, [VOW, VOW + 1, VOW + 2], s_woff, 12288)
        ins += [f"s_add_u32 {sr(s_xoff)}, {sr(s_xoff)}, 64", f"s_add_u32 {sr(s_woff)}, {sr(s_woff)}, {32*12288}"]
        return ins + adv_iss()

    def issue_kk():
        ins = dma(sK, kvo, s_koff, 0) + [f"s_add_u32 {sr(s_koff)}, {sr(s_koff)}, 12288"]
        ins += dma(sK, kvo, s_koff, 12288) + [f"s_add_u32 {sr(s_koff)}, {sr(s_koff)}, 12288"]
        return ins + adv_iss()

    def issue_vk():
        ins = dma(sV, kvo, s_voff, 0) + dma(sK, kvo, s_koff, 12288)
        ins += [f"s_add_u32 {sr(s_voff)}, {sr(s_voff)}, 12288", f"s_add_u32 {sr(s_koff)}, {sr(s_koff)}, 12288"]
        return ins + adv_iss()

    def adv_cur():
        e(f"s_add_u32 {sr(s_cur)}, {sr(s_cur)}, 24576")
        e(f"s_cmp_eq_u32 {sr(s_cur)}, 147456")
        e(f"s_cselect_b32 {sr(s_cur)}, 0, {sr(s_cur)}")

    for s in (s_xoff, s_woff, s_koff, s_voff, s_cur, s_iss, s_n, s_flag):
        e(f"s_mov_b32 {sr(s)}, 0")
    e(f"s_mov_b32 {sr(s_mb)}, {sr(s_wlds)}")
    e(f"s_mov_b32 {sr(s_c)}, 0x{f32bits(c2):08x}")
    e(f"s_mov_b32 {sr(s_thr)}, 0x{f32bits(1024.0):08x}")
    for _ in range(5):
        for ins in issue_xw():
            e(ins)
    s_head = 87
    e(f"s_mov_b32 {sr(s_head)}, 0")
    e.label("L_k1_head")
    e(f"s_mov_b32 {sr(s_n)}, 0")
    for i in range(144):
        e(f"v_accvgpr_write_b32 {ar(i)}, 0")

    XFS = [SB, SB + 12]
    s_nxt = 77
    LA = 4

    def calc_nxt():
        e(f"s_add_u32 {sr(s_nxt)}, {sr(s_cur)}, 24576")
        e(f"s_cmp_eq_u32 {sr(s_nxt)}, 147456")
        e(f"s_cselect_b32 {sr(s_nxt)}, 0, {sr(s_nxt)}")

    def q_groups(par):
        groups = []
        for dt in range(12):
            imm = 128 * (dt >> 2)
            reads = [(0, 2, "ds_read_b64_tr_b16 {dst}, " + f"{vr(VAC+(dt&3))} offset:{imm}"),
                     (2, 2, "ds_read_b64_tr_b16 {dst}, " + f"{vr(VAC+(dt&3))} offset:{imm+1536}")]
            mf = []
            for qt in range(3):
                a = (dt * 3 + qt) * 4
                mf.append(lambda b, a=a, qt=qt: f"v_mfma_f32_16x16x32_bf16 {ar(a,4)}, {vr(b,4)}, {vr(XFS[par]+4*qt,4)}, {ar(a,4)}")
            groups.append((reads, mf))
        return groups

    def q_addr(sbase, par):
        ins = [f"v_add_u32 {vr(KAC)}, {sr(sbase)}, {vr(XAB)}",
               f"s_add_u32 s78, {sr(sbase)}, 12288"]
        for i in range(4):
            ins.append(f"v_add_u32 {vr(VAC+i)}, s78, {vr(WAB+i)}")
        for qt in range(3):
            ins.append(f"ds_read_b128 {vr(XFS[par]+4*qt,4)}, {vr(KAC)} offset:{1024*qt}")
        return ins

    def q_body(par, issue, first=False, last=False):
        e("s_waitcnt vmcnt(18)")
        e("s_barrier")
        calc_nxt()
        if first:
            for ins in q_addr(s_cur, par):
                e(ins)
        ms = mfma_stream(q_groups(par), BUFS, LA, primed=not first,
                         next_groups=None if last else q_groups(1 - par),
                         addr_update=None if last else q_addr(s_nxt, 1 - par))
        merge(e, ms, issue, 0, 24)
        e(f"s_mov_b32 {sr(s_cur)}, {sr(s_nxt)}")

    stamp()
    q_body(0, issue_xw(), first=True)
    q_body(1, issue_xw())
    e.label("L_k1_q1")
    q_body(0, issue_xw())
    q_body(1, issue_xw())
    e(f"s_add_u32 {sr(s_n)}, {sr(s_n)}, 1")
    e(f"s_cmp_lt_u32 {sr(s_n)}, 6")
    e("s_cbranch_scc1 L_k1_q1")
    q_body(0, issue_xw())
    q_body(1, issue_kk())
    q_body(0, issue_vk())
    q_body(1, issue_vk())
    q_body(0, issue_vk())
    q_body(1, issue_vk(), last=True)

    stamp()
    e("s_nop 7")
    for Gd in range(6):
        for qt in range(3):
            qa = QF + (Gd * 3 + qt) * 4
            for half in range(2):
                a = ((2 * Gd + half) * 3 + qt) * 4
                for r in range(4):
                    e(f"v_accvgpr_read_b32 {vr(T+4*half+r)}, {ar(a+r)}")
            for i in range(8):
                e(f"v_mul_f32 {vr(T+i)}, {sr(s_c)}, {vr(T+i)}")
            e(f"v_cvt_pk_bf16_f32 {vr(qa)}, {vr(T)}, {vr(T+1)}")
            e(f"v_cvt_pk_bf16_f32 {vr(qa+1)}, {vr(T+2)}, {vr(T+3)}")
            e(f"v_cvt_pk_bf16_f32 {vr(qa+2)}, {vr(T+4)}, {vr(T+5)}")
            e(f"v_cvt_pk_bf16_f32 {vr(qa+3)}, {vr(T+6)}, {vr(T+7)}")
            e("s_nop 1")
            e(f"v_permlane32_swap_b32 {vr(qa)}, {vr(qa+2)}")
            e(f"v_permlane32_swap_b32 {vr(qa+1)}, {vr(qa+3)}")
            e("s_nop 1")
            e(f"v_permlane16_swap_b32 {vr(qa)}, {vr(qa+2)}")
            e(f"v_permlane16_swap_b32 {vr(qa+1)}, {vr(qa+3)}")
    for i in range(144):
        e(f"v_accvgpr_write_b32 {ar(i)}, 0")
    for qt in range(3):
        for i in range(4):
            e(f"v_mov_b32 {vr(NEGM+4*qt+i)}, 0")
        e(f"v_mov_b32 {vr(LS+qt)}, 0")
        e(f"v_mov_b32 {vr(AL+qt)}, 1.0")
    s_floor = 86
    e(f"s_mov_b32 {sr(s_floor)}, 0xff800000")

    def qk_groups(sbuf, kaddr, koff):
        groups = []
        for kt in range(2):
            for t in range(6):
                imm = 128 * (t >> 1) + 6144 * kt + koff
                reads = [(0, 4, "ds_read_b128 {dst}, " + f"{vr(kaddr+(t&1))} offset:{imm}")]
                mf = []
                for qt in range(3):
                    d = SB + 24 * sbuf + (kt * 3 + qt) * 4
                    c = vr(NEGM + 4 * qt, 4) if t == 0 else vr(d, 4)
                    mf.append(lambda b, d=d, c=c, t=t, qt=qt:
                              f"v_mfma_f32_16x16x32_bf16 {vr(d,4)}, {vr(b,4)}, {vr(QF+(t*3+qt)*4,4)}, {c}")
                groups.append((reads, mf))
        return groups

    def pv_groups(pbuf):
        groups = []
        for dt in range(12):
            imm = 128 * (dt >> 2)
            reads = [(0, 2, "ds_read_b64_tr_b16 {dst}, " + f"{vr(VAC+(dt&3))} offset:{imm}"),
                     (2, 2, "ds_read_b64_tr_b16 {dst}, " + f"{vr(VAC+(dt&3))} offset:{imm+6144}")]
            mf = []
            for qt in range(3):
                a = (dt * 3 + qt) * 4
                p = PB + 12 * pbuf + 4 * qt
                mf.append(lambda b, a=a, p=p: f"v_mfma_f32_16x16x32_bf16 {ar(a,4)}, {vr(b,4)}, {vr(p,4)}, {ar(a,4)}")
            groups.append((reads, mf))
        return groups

    slow_blocks = []

    def sm_list(buf, force=False):
        lab = e.newlabel("k1_sm")
        SUM = T

        def sreg(qt, i):
            return SB + 24 * buf + ((i >> 2) * 3 + qt) * 4 + (i & 3)

        def ereg(qt, i):
            return EB + qt * 8 + i

        def exps_sums():
            r = []
            for qt in range(3):
                for i in range(8):
                    r.append(f"v_exp_f32 {vr(ereg(qt,i))}, {vr(sreg(qt,i))}")
            for qt in range(3):
                r.append(f"v_add_f32 {vr(SUM+qt)}, {vr(ereg(qt,0))}, {vr(ereg(qt,1))}")
            for i in range(2, 8):
                for qt in range(3):
                    r.append(f"v_add_f32 {vr(SUM+qt)}, {vr(SUM+qt)}, {vr(ereg(qt,i))}")
            return r
        sb = []
        MX, tt = T + 3, T + 6
        for qt in range(3):
            sb.append(f"v_max3_f32 {vr(MX+qt)}, {vr(sreg(qt,0))}, {vr(sreg(qt,1))}, {vr(sreg(qt,2))}")
            sb.append(f"v_max3_f32 {vr(MX+qt)}, {vr(MX+qt)}, {vr(sreg(qt,3))}, {vr(sreg(qt,4))}")
            sb.append(f"v_max3_f32 {vr(MX+qt)}, {vr(MX+qt)}, {vr(sreg(qt,5))}, {vr(sreg(qt,6))}")
            sb.append(f"v_max_f32 {vr(MX+qt)}, {vr(MX+qt)}, {vr(sreg(qt,7))}")
            sb.append(f"v_mov_b32 {vr(tt)}, {vr(MX+qt)}")
            sb.append("s_nop 1")
            sb.append(f"v_permlane32_swap_b32 {vr(MX+qt)}, {vr(tt)}")
            sb.append(f"v_max_f32 {vr(MX+qt)}, {vr(MX+qt)}, {vr(tt)}")
            sb.append(f"v_mov_b32 {vr(tt)}, {vr(MX+qt)}")
            sb.append("s_nop 1")
            sb.append(f"v_permlane16_swap_b32 {vr(MX+qt)}, {vr(tt)}")
            sb.append(f"v_max_f32 {vr(MX+qt)}, {vr(MX+qt)}, {vr(tt)}")
            sb.append(f"v_max_f32 {vr(MX+qt)}, {sr(s_floor)}, {vr(MX+qt)}")
            sb.append(f"v_sub_f32 {vr(tt)}, 0, {vr(MX+qt)}")
            sb.append(f"v_exp_f32 {vr(AL+qt)}, {vr(tt)}")
            for i in range(4):
                sb.append(f"v_sub_f32 {vr(NEGM+4*qt+i)}, {vr(NEGM+4*qt+i)}, {vr(MX+qt)}")
            for i in range(8):
                sb.append(f"v_sub_f32 {vr(sreg(qt,i))}, {vr(sreg(qt,i))}, {vr(MX+qt)}")
            sb.append(f"v_mul_f32 {vr(LS+qt)}, {vr(LS+qt)}, {vr(AL+qt)}")
        sb += exps_sums()
        sb.append(f"s_mov_b32 {sr(s_flag)}, 1")
        sb.append(f"s_mov_b32 {sr(s_floor)}, 0")
        if force:
            p1 = sb
        else:
            p1 = exps_sums()
            for qt in range(3):
                p1.append(f"v_cmp_gt_f32 {sr(sF+2*qt,2)}, {vr(SUM+qt)}, {sr(s_thr)}")
            p1.append(f"s_or_b64 {sr(sF,2)}, {sr(sF,2)}, {sr(sF+2,2)}")
            p1.append(f"s_or_b64 {sr(sF,2)}, {sr(sF,2)}, {sr(sF+4,2)}")
            p1.append(f"s_cbranch_scc1 {lab}_slow")
            p1.append(f"{lab}_ret:")
            slow_blocks.append([f"{lab}_slow:"] + sb + [f"s_branch {lab}_ret"])
        p2 = []
        for qt in range(3):
            p2.append(f"v_add_f32 {vr(LS+qt)}, {vr(LS+qt)}, {vr(SUM+qt)}")
        for qt in range(3):
            for i in range(4):
                p2.append(f"v_cvt_pk_bf16_f32 {vr(PB+12*buf+4*qt+i)}, {vr(ereg(qt,2*i))}, {vr(ereg(qt,2*i+1))}")
        return p1, p2

    def split_ms(ms, nm):
        cnt = 0
        for idx, (k, t) in enumerate(ms):
            if k == 'm':
                cnt += 1
                if cnt == nm:
                    return ms[:idx + 1], ms[idx + 1:]
        return ms, []

    def rescale_check():
        lab = e.newlabel("k1_rs")
        e(f"s_cmp_eq_u32 {sr(s_flag)}, 0")
        e(f"s_cbranch_scc1 {lab}_skip")
        e("s_nop 7")
        for base in range(0, 144, 8):
            for i in range(8):
                e(f"v_accvgpr_read_b32 {vr(T+i)}, {ar(base+i)}")
            for i in range(8):
                qt = ((base + i) // 4) % 3
                e(f"v_mul_f32 {vr(T+i)}, {vr(T+i)}, {vr(AL+qt)}")
            for i in range(8):
                e(f"v_accvgpr_write_b32 {ar(base+i)}, {vr(T+i)}")
        e(f"s_mov_b32 {sr(s_flag)}, 0")
        e("s_nop 1")
        e.label(f"{lab}_skip")

    def v_addr(sbase):
        return [f"v_add_u32 {vr(VAC+i)}, {sr(sbase)}, {vr(VAB+i)}" for i in range(4)]

    e("s_waitcnt vmcnt(18)")
    e("s_barrier")
    calc_nxt()
    for i in range(2):
        e(f"v_add_u32 {vr(KAC+i)}, {sr(s_cur)}, {vr(KAB+i)}")
    g0 = qk_groups(0, KAC, 0)
    g1 = qk_groups(1, KAC, 12288)
    ms = mfma_stream(g0 + g1, BUFS, LA, next_groups=pv_groups(0), addr_update=v_addr(s_nxt))
    m_a, m_b = split_ms(ms, 36)
    p1, p2 = sm_list(0, force=True)
    merge(e, m_a, issue_vk(), 0, 20)
    e("s_nop 7")
    for x in p1:
        e(x)
    e("s_nop 1")
    merge(e, m_b, p2)
    e(f"s_mov_b32 {sr(s_flag)}, 0")
    e(f"s_mov_b32 {sr(s_cur)}, {sr(s_nxt)}")

    def a_body(j_par, do_qk, do_sm, last=False, iss="vk", pre=None):
        e("s_waitcnt vmcnt(18)")
        e("s_barrier")
        calc_nxt()
        if pre:
            for x in pre:
                e(x)
        if do_qk:
            e(f"s_add_u32 {sr(s_t0)}, {sr(s_cur)}, 12288")
            for i in range(2):
                e(f"v_add_u32 {vr(KAC+i)}, {sr(s_t0)}, {vr(KAB+i)}")
        groups = pv_groups(j_par)
        if do_qk:
            groups += qk_groups(j_par, KAC, 0)
        ms = mfma_stream(groups, BUFS, LA, primed=True,
                         next_groups=None if last else pv_groups(1 - j_par),
                         addr_update=None if last else v_addr(s_nxt))
        side = issue_vk() if iss == "vk" else issue_xw()
        if do_sm:
            p1, p2 = sm_list(1 - j_par)
            if do_qk:
                m_a, m_b = split_ms(ms, 36)
                merge(e, m_a, p1, 0, 34)
                merge(e, m_b, side + p2)
            else:
                merge(e, ms, p1 + side + p2)
        else:
            merge(e, ms, side)
        if do_sm:
            if not do_qk:
                e("s_nop 7")
            rescale_check()
        e(f"s_mov_b32 {sr(s_cur)}, {sr(s_nxt)}")

    switch = [f"s_mov_b32 {sr(s_xoff)}, 0", f"s_mov_b32 {sr(s_woff)}, 0",
              f"s_mov_b32 {sr(s_koff)}, 0", f"s_mov_b32 {sr(s_voff)}, 0",
              f"s_add_u32 {sr(sW)}, {sr(sW)}, 384", f"s_addc_u32 {sr(sW+1)}, {sr(sW+1)}, 0",
              f"s_sub_u32 {sr(sW+2)}, {sr(sW+2)}, 384",
              f"s_add_u32 {sr(sK)}, {sr(sK)}, 196608", f"s_addc_u32 {sr(sK+1)}, {sr(sK+1)}, 0",
              f"s_add_u32 {sr(sV)}, {sr(sV)}, 196608", f"s_addc_u32 {sr(sV+1)}, {sr(sV+1)}, 0",
              f"s_cmp_eq_u32 {sr(s_head)}, 0",
              f"s_cselect_b32 {sr(sW+2)}, {sr(sW+2)}, 0",
              f"s_cselect_b32 {sr(sX+2)}, {sr(sX+2)}, 0",
              f"s_cselect_b32 {sr(sK+2)}, {sr(sK+2)}, 0",
              f"s_cselect_b32 {sr(sV+2)}, {sr(sV+2)}, 0"]

    stamp()
    e(f"s_mov_b32 {sr(s_n)}, 0")
    e.label("L_k1_aloop")
    a_body(0, True, True)
    a_body(1, True, True)
    e(f"s_add_u32 {sr(s_n)}, {sr(s_n)}, 1")
    e(f"s_cmp_lt_u32 {sr(s_n)}, 5")
    e("s_cbranch_scc1 L_k1_aloop")
    a_body(0, True, True)
    a_body(1, True, True, iss="xw", pre=switch)
    a_body(0, True, True, iss="xw")
    a_body(1, True, True, iss="xw")
    a_body(0, False, True, iss="xw")
    a_body(1, False, False, last=True, iss="xw")

    stamp()
    tt = T + 8
    for qt in range(3):
        e(f"v_mov_b32 {vr(tt)}, {vr(LS+qt)}")
        e("s_nop 1")
        e(f"v_permlane32_swap_b32 {vr(LS+qt)}, {vr(tt)}")
        e(f"v_add_f32 {vr(LS+qt)}, {vr(LS+qt)}, {vr(tt)}")
        e(f"v_mov_b32 {vr(tt)}, {vr(LS+qt)}")
        e("s_nop 1")
        e(f"v_permlane16_swap_b32 {vr(LS+qt)}, {vr(tt)}")
        e(f"v_add_f32 {vr(LS+qt)}, {vr(LS+qt)}, {vr(tt)}")
        e(f"v_rcp_f32 {vr(LS+qt)}, {vr(LS+qt)}")
    e("s_nop 7")
    for qt in range(3):
        for Gd in range(6):
            qa = QF + (Gd * 3 + qt) * 4
            for half in range(2):
                a = ((2 * Gd + half) * 3 + qt) * 4
                for r in range(4):
                    e(f"v_accvgpr_read_b32 {vr(T+4*half+r)}, {ar(a+r)}")
            for i in range(8):
                e(f"v_mul_f32 {vr(T+i)}, {vr(T+i)}, {vr(LS+qt)}")
            for i in range(4):
                e(f"v_cvt_pk_bf16_f32 {vr(qa+i)}, {vr(T+2*i)}, {vr(T+2*i+1)}")
            e(f"s_movk_i32 s3, {Gd*2048}")
            e(f"buffer_store_dwordx4 {vr(qa,4)}, {vr(VOUT+qt)}, {sr(sO,4)}, s3 offen")
    for qt in range(3):
        e(f"v_add_u32 {vr(VOUT+qt)}, 12288, {vr(VOUT+qt)}")
    e(f"s_add_u32 {sr(s_head)}, {sr(s_head)}, 1")
    e(f"s_cmp_lt_u32 {sr(s_head)}, 2")
    e("s_cbranch_scc1 L_k1_head")
    e("s_waitcnt vmcnt(0)")
    stamp()
    if "stamp" in EXP:
        e("s_add_u32 s40, s36, 0xC800000")
        e("s_addc_u32 s41, s37, 0")
        e("s_mov_b32 s42, 0x100000")
        e("s_mov_b32 s43, 0x00020000")
        e("s_lshl_b32 s3, s2, 2")
        e(f"s_add_u32 s3, s3, {sr(s_w)}")
        e("s_lshl_b32 s3, s3, 6")
        e("v_mov_b32 v1, s3")
        for i in range(6):
            e(f"v_mov_b32 v2, s{88+2*i}")
            e(f"buffer_store_dword v2, v1, s[40:43], 0 offen offset:{4*i}")
        e("s_waitcnt vmcnt(0)")
    e.label("L_k1_end")
    e("s_endpgm")
    for sb in slow_blocks:
        for s in sb:
            if s.endswith(":"):
                e.label(s[:-1])
            else:
                e(s)


def gen_k2(e):
    ACC = 0
    FS = 8
    VOW = 56
    VOA = 57
    AB = 58
    BBs = 60
    AC = 61
    BC = 63
    VOP = 64
    T = 65
    sWO, sA, sP = 40, 44, 48
    s_blk, s_ks, s_rb, s_nc, s_w, s_wr, s_wc, s_mb, s_wooff, s_aoff, s_cur, s_nxt, s_n = range(60, 73)
    RING = 6
    STG = 24576
    NST = 48

    e.raw(".globl k2_kernel")
    e.raw(".p2align 8")
    e.raw(".type k2_kernel,@function")
    e.label("k2_kernel")
    e("s_cmp_ge_u32 s2, 240")
    e("s_cbranch_scc1 L_k2_end")
    e("s_load_dwordx2 s[16:17], s[0:1], 32")
    e("s_load_dwordx2 s[18:19], s[0:1], 72")
    e("s_load_dwordx2 s[36:37], s[0:1], 96")
    e("s_and_b32 s3, s2, 7")
    e(f"s_lshr_b32 {sr(s_blk)}, s3, 2")
    e(f"s_and_b32 {sr(s_ks)}, s3, 3")
    e("s_lshr_b32 s4, s2, 3")
    e("s_mul_i32 s5, s4, 52")
    e(f"s_lshr_b32 {sr(s_rb)}, s5, 8")
    e(f"s_mul_i32 s5, {sr(s_rb)}, 5")
    e(f"s_sub_u32 {sr(s_nc)}, s4, s5")
    e(f"v_lshrrev_b32 {vr(T)}, 6, v0")
    e("s_nop 0")
    e(f"v_readfirstlane_b32 {sr(s_w)}, {vr(T)}")
    e("s_waitcnt lgkmcnt(0)")
    e(f"s_lshr_b32 {sr(s_wr)}, {sr(s_w)}, 1")
    e(f"s_and_b32 {sr(s_wc)}, {sr(s_w)}, 1")
    e(f"s_cmp_eq_u32 {sr(s_blk)}, 0")
    e("s_cselect_b32 s4, s16, s18")
    e("s_cselect_b32 s5, s17, s19")
    e(f"s_mul_i32 s3, {sr(s_ks)}, {1536*1280}")
    e(f"s_lshl_b32 s6, {sr(s_nc)}, 8")
    e("s_add_u32 s3, s3, s6")
    e(f"s_add_u32 {sr(sWO)}, s4, s3")
    e(f"s_addc_u32 {sr(sWO+1)}, s5, 0")
    e(f"s_sub_u32 {sr(sWO+2)}, 7864320, s3")
    e(f"s_mov_b32 {sr(sWO+3)}, 0x00020000")
    e(f"s_mul_i32 s3, {sr(s_blk)}, 48")
    e(f"s_lshl_b32 s6, {sr(s_rb)}, 3")
    e("s_add_u32 s3, s3, s6")
    e("s_mul_i32 s3, s3, 393216")
    e(f"s_mul_i32 s6, {sr(s_ks)}, {96*1024}")
    e("s_add_u32 s3, s3, s6")
    e(f"s_add_u32 {sr(sA)}, s36, s3")
    e(f"s_addc_u32 {sr(sA+1)}, s37, 0")
    e(f"s_sub_u32 {sr(sA+2)}, {8*393216}, s6")
    e(f"s_mov_b32 {sr(sA+3)}, 0x00020000")
    e(f"s_mul_i32 s3, {sr(s_ks)}, 60")
    e(f"s_mul_i32 s6, {sr(s_blk)}, 30")
    e("s_add_u32 s3, s3, s6")
    e(f"s_mul_i32 s6, {sr(s_rb)}, 5")
    e("s_add_u32 s3, s3, s6")
    e(f"s_add_u32 s3, s3, {sr(s_nc)}")
    e("s_lshl_b32 s3, s3, 17")
    e(f"s_add_u32 s3, s3, {WS_P_OFF}")
    e(f"s_add_u32 {sr(sP)}, s36, s3")
    e(f"s_addc_u32 {sr(sP+1)}, s37, 0")
    e(f"s_mov_b32 {sr(sP+2)}, 131072")
    e(f"s_mov_b32 {sr(sP+3)}, 0x00020000")

    LANE, HH, GP, R, C = 1, 2, 3, 4, 5
    t0, t1, t2, t3 = T, T + 1, T + 2, T + 3
    e(f"v_and_b32 {vr(LANE)}, 63, v0")
    e(f"v_lshrrev_b32 {vr(HH)}, 5, {vr(LANE)}")
    e(f"v_bfe_u32 {vr(GP)}, {vr(LANE)}, 4, 1")
    e(f"v_bfe_u32 {vr(R)}, {vr(LANE)}, 2, 2")
    e(f"v_and_b32 {vr(C)}, 3, {vr(LANE)}")
    e(f"v_lshrrev_b32 {vr(t0)}, 4, {vr(LANE)}")
    e(f"v_and_b32 {vr(t1)}, 15, {vr(LANE)}")
    e(f"v_lshlrev_b32 {vr(t2)}, 2, {vr(t0)}")
    e(f"v_xor_b32 {vr(t1)}, {vr(t1)}, {vr(t2)}")
    e(f"v_lshlrev_b32 {vr(t1)}, 4, {vr(t1)}")
    e(f"v_mul_u32_u24 {vr(t0)}, 1280, {vr(t0)}")
    e(f"s_mul_i32 s3, {sr(s_w)}, {8*1280}")
    e(f"v_add3_u32 {vr(VOW)}, {vr(t0)}, {vr(t1)}, s3")
    e(f"s_mul_i32 s3, {sr(s_w)}, {2*393216}")
    e(f"v_lshlrev_b32 {vr(VOA)}, 4, {vr(LANE)}")
    e(f"v_add_u32 {vr(VOA)}, s3, {vr(VOA)}")
    e(f"v_lshlrev_b32 {vr(t0)}, 2, {vr(HH)}")
    e(f"v_add_u32 {vr(t0)}, {vr(t0)}, {vr(R)}")
    e(f"v_lshlrev_b32 {vr(t0)}, 8, {vr(t0)}")
    e(f"v_and_b32 {vr(t1)}, 1, {vr(C)}")
    e(f"v_lshlrev_b32 {vr(t1)}, 3, {vr(t1)}")
    e(f"v_add_u32 {vr(t0)}, {vr(t0)}, {vr(t1)}")
    e(f"v_lshlrev_b32 {vr(t2)}, 2, {vr(R)}")
    e(f"s_lshl_b32 s3, {sr(s_wc)}, 3")
    for nt in range(2):
        e(f"v_lshrrev_b32 {vr(t1)}, 1, {vr(C)}")
        e(f"v_lshl_add_u32 {vr(t1)}, {vr(GP)}, 1, {vr(t1)}")
        e(f"v_add3_u32 {vr(t1)}, {vr(t1)}, s3, {4*nt}")
        e(f"v_xor_b32 {vr(t1)}, {vr(t1)}, {vr(t2)}")
        e(f"v_lshlrev_b32 {vr(t1)}, 4, {vr(t1)}")
        e(f"v_add3_u32 {vr(AB+nt)}, {vr(t0)}, {vr(t1)}, 0")
        e(f"v_add_u32 {vr(AB+nt)}, 16384, {vr(AB+nt)}")
    e(f"s_lshl_b32 s3, {sr(s_wr)}, 13")
    e(f"v_lshlrev_b32 {vr(BBs)}, 4, {vr(LANE)}")
    e(f"v_add_u32 {vr(BBs)}, s3, {vr(BBs)}")
    e(f"s_lshl_b32 s3, {sr(s_w)}, 15")
    e(f"v_lshlrev_b32 {vr(VOP)}, 4, {vr(LANE)}")
    e(f"v_add_u32 {vr(VOP)}, s3, {vr(VOP)}")

    def issue():
        ins = []
        for i in range(4):
            ins.append(f"s_add_u32 m0, {sr(s_mb)}, {1024*i}")
            ins.append(f"s_add_u32 s3, {sr(s_aoff)}, {(i>>1)*393216 + (i&1)*1024}")
            ins.append(f"buffer_load_dwordx4 {vr(VOA)}, {sr(sA,4)}, s3 offen lds")
        for i in range(2):
            ins.append(f"s_add_u32 m0, s78, {1024*i}")
            ins.append(f"s_add_u32 s3, {sr(s_wooff)}, {i*4*1280}")
            ins.append(f"buffer_load_dwordx4 {vr(VOW)}, {sr(sWO,4)}, s3 offen lds")
        ins += [f"s_add_u32 {sr(s_aoff)}, {sr(s_aoff)}, 2048",
                f"s_add_u32 {sr(s_wooff)}, {sr(s_wooff)}, {32*1280}",
                f"s_add_u32 {sr(s_mb)}, {sr(s_mb)}, {STG}",
                f"s_cmp_ge_u32 {sr(s_mb)}, {RING*STG}",
                f"s_cselect_b32 {sr(s_mb)}, s76, {sr(s_mb)}",
                f"s_add_u32 s78, {sr(s_mb)}, s77"]
        return ins

    e(f"s_lshl_b32 s76, {sr(s_w)}, 12")
    e(f"s_lshl_b32 s77, {sr(s_w)}, 11")
    e("s_sub_u32 s77, 16384, s77")
    e(f"s_mov_b32 {sr(s_mb)}, s76")
    e(f"s_add_u32 s78, {sr(s_mb)}, s77")
    e(f"s_mov_b32 {sr(s_aoff)}, 0")
    e(f"s_mov_b32 {sr(s_wooff)}, 0")
    e(f"s_mov_b32 {sr(s_cur)}, 0")
    e(f"s_mov_b32 {sr(s_n)}, 0")
    for _ in range(RING - 1):
        for ins in issue():
            e(ins)
    for i in range(128):
        e(f"v_accvgpr_write_b32 {ar(ACC+i)}, 0")

    def reads(ks, fs):
        b = FS + 24 * fs
        r = []
        for nt in range(2):
            r.append(f"ds_read_b64_tr_b16 {vr(b+4*nt,2)}, {vr(AC+nt)} offset:{2048*ks}")
            r.append(f"ds_read_b64_tr_b16 {vr(b+4*nt+2,2)}, {vr(AC+nt)} offset:{2048*ks+4096}")
        for qt in range(4):
            r.append(f"ds_read_b128 {vr(b+8+4*qt,4)}, {vr(BC)} offset:{2048*qt+1024*ks}")
        return r

    def mfmas(fs):
        b = FS + 24 * fs
        m = []
        for qt in range(4):
            for nt in range(2):
                a = ACC + (qt * 2 + nt) * 16
                m.append(f"v_mfma_f32_32x32x16_bf16 {ar(a,16)}, {vr(b+4*nt,4)}, {vr(b+8+4*qt,4)}, {ar(a,16)}")
        return m

    def addr(sb):
        return [f"v_add_u32 {vr(AC)}, {sr(sb)}, {vr(AB)}", f"v_add_u32 {vr(AC+1)}, {sr(sb)}, {vr(AB+1)}",
                f"v_add_u32 {vr(BC)}, {sr(sb)}, {vr(BBs)}"]

    def inter(m, side):
        k = 0
        for i, x in enumerate(m):
            e(x)
            tgt = ((i + 1) * len(side) + len(m) - 1) // len(m)
            while k < tgt:
                e(side[k])
                k += 1

    def stage(first=False, last=False):
        e("s_waitcnt vmcnt(18)")
        e("s_barrier")
        e(f"s_add_u32 {sr(s_nxt)}, {sr(s_cur)}, {STG}")
        e(f"s_cmp_eq_u32 {sr(s_nxt)}, {RING*STG}")
        e(f"s_cselect_b32 {sr(s_nxt)}, 0, {sr(s_nxt)}")
        if first:
            for x in addr(s_cur) + reads(0, 0):
                e(x)
        e("s_waitcnt lgkmcnt(0)")
        iss = issue()
        h = len(iss) // 2
        inter(mfmas(0), reads(1, 1) + iss[:h])
        e("s_waitcnt lgkmcnt(0)")
        inter(mfmas(1), ([] if last else addr(s_nxt) + reads(0, 0)) + iss[h:])
        e(f"s_mov_b32 {sr(s_cur)}, {sr(s_nxt)}")

    stage(first=True)
    e.label("L_k2_loop")
    stage()
    e(f"s_add_u32 {sr(s_n)}, {sr(s_n)}, 1")
    e(f"s_cmp_lt_u32 {sr(s_n)}, {NST-2}")
    e("s_cbranch_scc1 L_k2_loop")
    stage(last=True)
    e("s_nop 15")
    for i in range(32):
        e(f"s_movk_i32 s3, {1024*i}")
        e(f"buffer_store_dwordx4 {ar(ACC+4*i,4)}, {vr(VOP)}, {sr(sP,4)}, s3 offen")
    e("s_waitcnt vmcnt(0)")
    e.label("L_k2_end")
    e("s_endpgm")


def gen_k3(e):
    e.raw(".globl k3_kernel")
    e.raw(".p2align 8")
    e.raw(".type k3_kernel,@function")
    e.label("k3_kernel")
    e("s_cmp_ge_u32 s2, 1920")
    e("s_cbranch_scc1 L_k3_end")
    e("s_load_dwordx2 s[4:5], s[0:1], 80")
    e("s_load_dwordx2 s[6:7], s[0:1], 96")
    e("s_waitcnt lgkmcnt(0)")
    e("s_mov_b32 s8, s4")
    e("s_mov_b32 s9, s5")
    e("s_mov_b32 s10, 3932160")
    e("s_mov_b32 s11, 0x00020000")
    e(f"s_add_u32 s12, s6, {WS_P_OFF}")
    e("s_addc_u32 s13, s7, 0")
    e("s_mov_b32 s14, 31457280")
    e("s_mov_b32 s15, 0x00020000")
    e("s_lshl_b32 s16, s2, 12")
    e("v_lshlrev_b32 v2, 4, v0")
    e("v_add_u32 v2, s16, v2")
    for ks in range(4):
        e(f"s_mov_b32 s19, {ks*60*131072}")
        e(f"buffer_load_dwordx4 v[{8+4*ks}:{11+4*ks}], v2, s[12:15], s19 offen")
    e("s_lshr_b32 s17, s2, 5")
    e("s_cmp_ge_u32 s17, 30")
    e("s_cselect_b32 s18, 1, 0")
    e("s_mul_i32 s20, s18, 30")
    e("s_sub_u32 s17, s17, s20")
    e("s_mul_i32 s20, s17, 52")
    e("s_lshr_b32 s20, s20, 8")
    e("s_mul_i32 s21, s20, 5")
    e("s_sub_u32 s21, s17, s21")
    e("s_bfe_u32 s22, s2, 0x20003")
    e("s_and_b32 s23, s2, 7")
    e("s_lshr_b32 s24, s23, 1")
    e("s_and_b32 s25, s23, 1")
    e("s_lshr_b32 s26, s22, 1")
    e("s_and_b32 s27, s22, 1")
    e("s_lshl_b32 s28, s20, 8")
    e("s_lshl_b32 s29, s26, 7")
    e("s_add_u32 s28, s28, s29")
    e("s_lshl_b32 s29, s24, 5")
    e("s_add_u32 s28, s28, s29")
    e("s_mul_i32 s30, s18, 640")
    e("s_lshl_b32 s29, s21, 7")
    e("s_add_u32 s30, s30, s29")
    e("s_lshl_b32 s29, s27, 6")
    e("s_add_u32 s30, s30, s29")
    e("s_lshl_b32 s29, s25, 5")
    e("s_add_u32 s30, s30, s29")
    e("v_and_b32 v3, 31, v0")
    e("v_add_u32 v3, s28, v3")
    e("v_mul_u32_u24 v3, 2560, v3")
    e("v_lshrrev_b32 v4, 6, v0")
    e("v_lshlrev_b32 v4, 3, v4")
    e("v_bfe_u32 v5, v0, 5, 1")
    e("v_lshl_add_u32 v4, v5, 2, v4")
    e("v_add_u32 v4, s30, v4")
    e("v_lshl_add_u32 v3, v4, 1, v3")
    e("s_waitcnt vmcnt(0)")
    for i in range(4):
        e(f"v_add_f32 v{8+i}, v{8+i}, v{12+i}")
        e(f"v_add_f32 v{16+i}, v{16+i}, v{20+i}")
    for i in range(4):
        e(f"v_add_f32 v{8+i}, v{8+i}, v{16+i}")
    e("v_cvt_pk_bf16_f32 v24, v8, v9")
    e("v_cvt_pk_bf16_f32 v25, v10, v11")
    e("buffer_store_dwordx2 v[24:25], v3, s[8:11], 0 offen")
    e("s_waitcnt vmcnt(0)")
    e.label("L_k3_end")
    e("s_endpgm")


def desc2(name, nfv, acc, sgpr=96):
    return f""".amdhsa_kernel {name}
  .amdhsa_next_free_vgpr {nfv}
  .amdhsa_next_free_sgpr {sgpr}
  .amdhsa_accum_offset {acc}
  .amdhsa_group_segment_fixed_size 0
  .amdhsa_kernarg_size 104
  .amdhsa_user_sgpr_count 2
  .amdhsa_user_sgpr_kernarg_segment_ptr 1
  .amdhsa_system_sgpr_workgroup_id_x 1
.end_amdhsa_kernel
"""


def main():
    e = Emitter()
    out = HEADER
    out += "; @launch kernel=k1_kernel grid=(256,1,1) block=(256,1,1) lds=147456\n"
    out += "; @launch kernel=k2_kernel grid=(240,1,1) block=(256,1,1) lds=147456\n"
    out += "; @launch kernel=k3_kernel grid=(1920,1,1) block=(256,1,1) lds=0\n"
    out += '.amdgcn_target "amdgcn-amd-amdhsa--gfx950"\n.text\n'
    gen_k1(e)
    gen_k2(e)
    gen_k3(e)
    out += e.text()
    out += '.section .rodata,"a"\n.p2align 6\n'
    out += desc2("k1_kernel", 400, 256, 102)
    out += ".p2align 6\n" + desc2("k2_kernel", 72+128, 72)
    out += ".p2align 6\n" + desc("k3_kernel", 32)
    path = sys.argv[1] if len(sys.argv) > 1 else f"cdna_kernels/{NAME}.s"
    open(path, "w").write(out)


if __name__ == "__main__":
    main()
```

```python
import math
import struct
import sys
import os
EXP = os.environ.get("EXP", "")

from gen import HEADER, NAME, WS_P_OFF, Emitter, vr, sr, desc


def ar(a, n=1):
    return f"a{a}" if n == 1 else f"a[{a}:{a+n-1}]"


def f32bits(x):
    return struct.unpack("<I", struct.pack("<f", x))[0]


def mfma_stream(groups, bufs, lookahead, primed=False, next_groups=None, addr_update=None, pre_out=0):
    out = []
    if "nocomp" in EXP:
        return [('m', 's_nop 0') for _ in range(sum(len(g[1]) for g in groups))]
    nb = len(bufs)
    assert lookahead < nb
    allg = list(groups) + (list(next_groups[:lookahead]) if next_groups else [])
    if next_groups:
        assert len(groups) % nb == 0
    issued = 0
    last = {}

    def issue(o, emit=True):
        nonlocal issued
        b = bufs[o % nb]
        if o == len(groups) and emit and addr_update:
            for t in addr_update:
                out.append(('i', t))
                if t.startswith("ds_read"):
                    issued += 1
        for (roff, rn, fmt) in allg[o][0]:
            if emit:
                out.append(('i', fmt.format(dst=vr(b + roff, rn))))
            issued += 1
        last[o] = issued
    nxt = 0
    while nxt < min(lookahead, len(allg)):
        issue(nxt, emit=not primed)
        nxt += 1
    for o, (reads, mf) in enumerate(groups):
        if nxt < len(allg):
            issue(nxt)
            nxt += 1
        n = issued - last[o]
        assert n <= 15, n
        out.append(('i', f"s_waitcnt lgkmcnt({n})"))
        for fn in mf:
            out.append(('m', fn(bufs[o % nb])))
    return out


def merge(e, ms, side, start=0, end=None):
    nm = sum(1 for k, _ in ms if k == 'm')
    if end is None:
        end = nm
    span = max(1, end - start)
    ns = len(side)
    mi = 0
    si = 0
    for k, t in ms:
        e(t)
        if k == 'm':
            if mi >= start:
                tgt = min(ns, ((mi - start + 1) * ns + span - 1) // span)
                while si < tgt or (si < ns and side[si].endswith(":")):
                    s = side[si]
                    if s.endswith(":"):
                        e.label(s[:-1])
                    else:
                        e(s)
                    si += 1
            mi += 1
    while si < ns:
        s = side[si]
        if s.endswith(":"):
            e.label(s[:-1])
        else:
            e(s)
        si += 1


def gen_k1(e):
    QF = 0
    SB = 72
    PB = 120
    BUFS = [144 + 4 * i for i in range(6)]
    NEGM = 168
    KAB, VAB, KAC, VAC = 180, 182, 186, 188
    WAB, XAB = 192, 204
    VOKV, VOW, VOX = 197, 200, 203
    LS, AL = 206, 209
    T = 212
    VOUT = 224
    EB = 228

    sX, sW, sK, sV, sO = 40, 44, 48, 52, 56
    s_n, s_cur, s_iss, s_xoff, s_woff, s_koff, s_voff, s_wlds, s_t0, s_t1, s_c, s_thr, s_flag = range(60, 73)
    s_b, s_h, s_blk, s_w = 73, 74, 75, 76
    sF = 80

    c2 = (192 ** -0.5) * math.log2(math.e)
    stamp_n = [0]

    def stamp():
        if "stamp" in EXP:
            e(f"s_memtime s[{88+2*stamp_n[0]}:{89+2*stamp_n[0]}]")
            e("s_waitcnt lgkmcnt(0)")
            stamp_n[0] += 1

    e.raw(".globl k1_kernel")
    e.raw(".p2align 8")
    e.raw(".type k1_kernel,@function")
    e.label("k1_kernel")
    e("s_cmp_ge_u32 s2, 256")
    e("s_cbranch_scc1 L_k1_end")
    stamp()
    e("s_load_dwordx16 s[16:31], s[0:1], 0")
    e("s_load_dwordx4 s[32:35], s[0:1], 64")
    e("s_load_dwordx2 s[36:37], s[0:1], 96")
    e("s_and_b32 s3, s2, 7")
    e("s_lshr_b32 s4, s2, 3")
    e(f"s_and_b32 {sr(s_b)}, s4, 7")
    e("s_lshr_b32 s4, s4, 3")
    e("s_lshl_b32 s4, s4, 1")
    e("s_lshl_b32 s3, s3, 3")
    e("s_add_u32 s3, s3, s4")
    e(f"s_lshr_b32 {sr(s_blk)}, s3, 5")
    e(f"s_and_b32 {sr(s_h)}, s3, 31")
    e(f"v_lshrrev_b32 {vr(T)}, 6, v0")
    e("s_nop 0")
    e(f"v_readfirstlane_b32 {sr(s_w)}, {vr(T)}")
    e("s_waitcnt lgkmcnt(0)")
    e(f"s_cmp_eq_u32 {sr(s_blk)}, 0")
    for i, (a, b) in enumerate(((16, 26), (17, 27), (18, 28), (19, 29), (20, 30), (21, 31), (22, 32), (23, 33))):
        e(f"s_cselect_b32 s{4+i}, s{a}, s{b}")
    e(f"s_mul_i32 s3, {sr(s_b)}, 245760")
    e(f"s_add_u32 {sr(sX)}, s4, s3")
    e(f"s_addc_u32 {sr(sX+1)}, s5, 0")
    e(f"s_mov_b32 {sr(sX+2)}, 245760")
    e(f"s_mov_b32 {sr(sX+3)}, 0x00020000")
    e(f"s_mul_i32 s3, {sr(s_h)}, 384")
    e(f"s_add_u32 {sr(sW)}, s10, s3")
    e(f"s_addc_u32 {sr(sW+1)}, s11, 0")
    e(f"s_sub_u32 {sr(sW+2)}, 7864320, s3")
    e(f"s_mov_b32 {sr(sW+3)}, 0x00020000")
    e(f"s_lshl_b32 s3, {sr(s_b)}, 5")
    e(f"s_add_u32 s3, s3, {sr(s_h)}")
    e("s_mul_i32 s3, s3, 196608")
    e(f"s_add_u32 {sr(sK)}, s6, s3")
    e(f"s_addc_u32 {sr(sK+1)}, s7, 0")
    e(f"s_mov_b32 {sr(sK+2)}, 196608")
    e(f"s_mov_b32 {sr(sK+3)}, 0x00020000")
    e(f"s_add_u32 {sr(sV)}, s8, s3")
    e(f"s_addc_u32 {sr(sV+1)}, s9, 0")
    e(f"s_mov_b32 {sr(sV+2)}, 196608")
    e(f"s_mov_b32 {sr(sV+3)}, 0x00020000")
    e(f"s_lshl_b32 s3, {sr(s_blk)}, 3")
    e(f"s_add_u32 s3, s3, {sr(s_b)}")
    e("s_mul_i32 s3, s3, 2359296")
    e(f"s_add_u32 {sr(sO)}, s36, s3")
    e(f"s_addc_u32 {sr(sO+1)}, s37, 0")
    e(f"s_mov_b32 {sr(sO+2)}, 2359296")
    e(f"s_mov_b32 {sr(sO+3)}, 0x00020000")
    e(f"s_mul_i32 {sr(s_wlds)}, {sr(s_w)}, 3072")

    LANE, G, L15, R, C = 1, 2, 3, 4, 5
    t0, t1, t2, t3, t4 = T, T + 1, T + 2, T + 3, T + 4
    e(f"v_and_b32 {vr(LANE)}, 63, v0")
    e(f"v_lshrrev_b32 {vr(G)}, 4, {vr(LANE)}")
    e(f"v_and_b32 {vr(L15)}, 15, {vr(LANE)}")
    e(f"v_bfe_u32 {vr(R)}, {vr(LANE)}, 2, 2")
    e(f"v_and_b32 {vr(C)}, 3, {vr(LANE)}")
    e("s_movk_i32 s3, 2731")
    e(f"s_lshl_b32 s4, {sr(s_w)}, 3")
    for i in range(3):
        e(f"v_add_u32 {vr(t0)}, {64*i}, {vr(LANE)}")
        e(f"v_mul_lo_u32 {vr(t1)}, {vr(t0)}, s3")
        e(f"v_lshrrev_b32 {vr(t1)}, 16, {vr(t1)}")
        e(f"v_mul_u32_u24 {vr(t2)}, 24, {vr(t1)}")
        e(f"v_sub_u32 {vr(t0)}, {vr(t0)}, {vr(t2)}")
        e(f"v_add_u32 {vr(t1)}, s4, {vr(t1)}")
        e(f"v_and_b32 {vr(t2)}, {0 if 'noswz' in EXP else 6}, {vr(t1)}")
        e(f"v_xor_b32 {vr(t2)}, {vr(t0)}, {vr(t2)}")
        e(f"v_lshlrev_b32 {vr(t2)}, 4, {vr(t2)}")
        e(f"v_mul_u32_u24 {vr(t3)}, 384, {vr(t1)}")
        e(f"v_add_u32 {vr(VOKV+i)}, {vr(t2)}, {vr(t3)}")
        e(f"v_and_b32 {vr(t2)}, 2, {vr(t1)}")
        e(f"v_bfe_u32 {vr(t3)}, {vr(t1)}, 3, 1")
        e(f"v_lshlrev_b32 {vr(t3)}, 2, {vr(t3)}")
        e(f"v_or_b32 {vr(t2)}, {vr(t2)}, {vr(t3)}")
        if 'noswz' in EXP:
            e(f"v_mov_b32 {vr(t2)}, 0")
        e(f"v_xor_b32 {vr(t2)}, {vr(t0)}, {vr(t2)}")
        e(f"v_lshlrev_b32 {vr(t2)}, 4, {vr(t2)}")
        e(f"v_mul_u32_u24 {vr(t3)}, 12288, {vr(t1)}")
        e(f"v_add_u32 {vr(VOW+i)}, {vr(t2)}, {vr(t3)}")
    e(f"v_lshrrev_b32 {vr(t0)}, 3, {vr(LANE)}")
    e(f"v_and_b32 {vr(t1)}, 6, {vr(t0)}")
    e(f"v_and_b32 {vr(t2)}, 7, {vr(LANE)}")
    e(f"v_xor_b32 {vr(t1)}, {vr(t2)}, {vr(t1)}")
    e(f"v_lshlrev_b32 {vr(t1)}, 4, {vr(t1)}")
    e(f"v_mul_u32_u24 {vr(t0)}, 1280, {vr(t0)}")
    e(f"s_mul_i32 s4, {sr(s_w)}, {48*1280}")
    e(f"v_add3_u32 {vr(VOX)}, {vr(t0)}, {vr(t1)}, s4")
    e(f"v_and_b32 {vr(t2)}, 6, {vr(L15)}")
    e(f"v_mul_u32_u24 {vr(t3)}, 384, {vr(L15)}")
    for tp in range(2):
        e(f"v_add_u32 {vr(t0)}, {4*tp}, {vr(G)}")
        e(f"v_xor_b32 {vr(t0)}, {vr(t0)}, {vr(t2)}")
        e(f"v_lshlrev_b32 {vr(t0)}, 4, {vr(t0)}")
        e(f"v_add3_u32 {vr(KAB+tp)}, {vr(t0)}, {vr(t3)}, 0")
    e(f"v_lshlrev_b32 {vr(t4)}, 2, {vr(G)}")
    e(f"v_add_u32 {vr(t4)}, {vr(t4)}, {vr(R)}")
    e(f"v_and_b32 {vr(t2)}, 6, {vr(t4)}")
    e(f"v_mul_u32_u24 {vr(t3)}, 384, {vr(t4)}")
    e(f"v_and_b32 {vr(t1)}, 1, {vr(C)}")
    e(f"v_lshlrev_b32 {vr(t1)}, 3, {vr(t1)}")
    e(f"v_add_u32 {vr(t3)}, {vr(t3)}, {vr(t1)}")
    for d4 in range(4):
        e(f"v_lshrrev_b32 {vr(t0)}, 1, {vr(C)}")
        e(f"v_add_u32 {vr(t0)}, {2*d4}, {vr(t0)}")
        e(f"v_xor_b32 {vr(t0)}, {vr(t0)}, {vr(t2)}")
        e(f"v_lshlrev_b32 {vr(t0)}, 4, {vr(t0)}")
        e(f"v_add_u32 {vr(VAB+d4)}, {vr(t0)}, {vr(t3)}")
    e(f"v_lshlrev_b32 {vr(t4)}, 3, {vr(G)}")
    e(f"v_add_u32 {vr(t4)}, {vr(t4)}, {vr(R)}")
    e(f"v_and_b32 {vr(t2)}, 2, {vr(R)}")
    e(f"v_and_b32 {vr(t0)}, 1, {vr(G)}")
    e(f"v_lshlrev_b32 {vr(t0)}, 2, {vr(t0)}")
    e(f"v_or_b32 {vr(t2)}, {vr(t2)}, {vr(t0)}")
    e(f"v_mul_u32_u24 {vr(t3)}, 384, {vr(t4)}")
    e(f"v_add_u32 {vr(t3)}, {vr(t3)}, {vr(t1)}")
    for d4 in range(4):
        e(f"v_lshrrev_b32 {vr(t0)}, 1, {vr(C)}")
        e(f"v_add_u32 {vr(t0)}, {2*d4}, {vr(t0)}")
        e(f"v_xor_b32 {vr(t0)}, {vr(t0)}, {vr(t2)}")
        e(f"v_lshlrev_b32 {vr(t0)}, 4, {vr(t0)}")
        e(f"v_add3_u32 {vr(WAB+d4)}, {vr(t0)}, {vr(t3)}, 0")
    e(f"v_and_b32 {vr(t2)}, 6, {vr(L15)}")
    e(f"v_lshlrev_b32 {vr(t1)}, 7, {vr(L15)}")
    e(f"s_mul_i32 s4, {sr(s_w)}, {48*128}")
    for sx in range(2):
        e(f"v_add_u32 {vr(t0)}, {4*sx}, {vr(G)}")
        e(f"v_xor_b32 {vr(t0)}, {vr(t0)}, {vr(t2)}")
        e(f"v_lshlrev_b32 {vr(t0)}, 4, {vr(t0)}")
        e(f"v_add3_u32 {vr(XAB+sx)}, {vr(t0)}, {vr(t1)}, s4")
    e(f"s_mul_i32 s3, {sr(s_w)}, 48")
    e(f"s_mul_i32 s4, {sr(s_h)}, 12288")
    for qt in range(3):
        e(f"v_add3_u32 {vr(t0)}, {vr(L15)}, s3, {16*qt}")
        e(f"v_lshrrev_b32 {vr(t1)}, 5, {vr(t0)}")
        e(f"v_mul_u32_u24 {vr(t1)}, 0x60000, {vr(t1)}")
        e(f"v_and_b32 {vr(t0)}, 31, {vr(t0)}")
        e(f"v_and_b32 {vr(t2)}, 1, {vr(G)}")
        e(f"v_lshl_add_u32 {vr(t0)}, {vr(t2)}, 5, {vr(t0)}")
        e(f"v_lshlrev_b32 {vr(t0)}, 4, {vr(t0)}")
        e(f"v_lshrrev_b32 {vr(t2)}, 1, {vr(G)}")
        e(f"v_lshlrev_b32 {vr(t2)}, 10, {vr(t2)}")
        e(f"v_add3_u32 {vr(t0)}, {vr(t0)}, {vr(t1)}, {vr(t2)}")
        e(f"v_add_u32 {vr(VOUT+qt)}, s4, {vr(t0)}")

    s_mb = 79

    def dma(srd, vo_list, soff_s, unit_add):
        ins = []
        for i in range(3):
            ins.append(f"s_add_u32 m0, {sr(s_mb)}, {unit_add + 1024*i}")
            ins.append("s_nop 0")
            if "nodma" not in EXP:
                ins.append(f"buffer_load_dwordx4 {vr(vo_list[i])}, {sr(srd,4)}, {sr(soff_s)} offen{' nt' if 'kvnt' in EXP else ''} lds")
        return ins

    def adv_iss():
        return [f"s_add_u32 {sr(s_mb)}, {sr(s_mb)}, 24576",
                f"s_cmp_ge_u32 {sr(s_mb)}, 147456",
                f"s_cselect_b32 {sr(s_mb)}, {sr(s_wlds)}, {sr(s_mb)}"]

    kvo = [VOKV, VOKV + 1, VOKV + 2]

    def issue_xw():
        ins = dma(sX, [VOX, VOX + 1, VOX + 2], s_xoff, 0) + dma(sW, [VOW, VOW + 1, VOW + 2], s_woff, 12288)
        ins += [f"s_add_u32 {sr(s_xoff)}, {sr(s_xoff)}, 64", f"s_add_u32 {sr(s_woff)}, {sr(s_woff)}, {32*12288}"]
        return ins + adv_iss()

    def issue_kk():
        ins = dma(sK, kvo, s_koff, 0) + [f"s_add_u32 {sr(s_koff)}, {sr(s_koff)}, 12288"]
        ins += dma(sK, kvo, s_koff, 12288) + [f"s_add_u32 {sr(s_koff)}, {sr(s_koff)}, 12288"]
        return ins + adv_iss()

    def issue_vk():
        ins = dma(sV, kvo, s_voff, 0) + dma(sK, kvo, s_koff, 12288)
        ins += [f"s_add_u32 {sr(s_voff)}, {sr(s_voff)}, 12288", f"s_add_u32 {sr(s_koff)}, {sr(s_koff)}, 12288"]
        return ins + adv_iss()

    def adv_cur():
        e(f"s_add_u32 {sr(s_cur)}, {sr(s_cur)}, 24576")
        e(f"s_cmp_eq_u32 {sr(s_cur)}, 147456")
        e(f"s_cselect_b32 {sr(s_cur)}, 0, {sr(s_cur)}")

    for s in (s_xoff, s_woff, s_koff, s_voff, s_cur, s_iss, s_n, s_flag):
        e(f"s_mov_b32 {sr(s)}, 0")
    e(f"s_mov_b32 {sr(s_mb)}, {sr(s_wlds)}")
    e(f"s_mov_b32 {sr(s_c)}, 0x{f32bits(c2):08x}")
    e(f"s_mov_b32 {sr(s_thr)}, 0x{f32bits(1024.0):08x}")
    s_head = 87
    s_nxt = 77
    LA = 4
    e(f"s_mov_b32 {sr(s_head)}, 0")

    def calc_nxt():
        e(f"s_add_u32 {sr(s_nxt)}, {sr(s_cur)}, 24576")
        e(f"s_cmp_eq_u32 {sr(s_nxt)}, 147456")
        e(f"s_cselect_b32 {sr(s_nxt)}, 0, {sr(s_nxt)}")

    e(f"s_mul_i32 s78, {sr(s_w)}, 6144")

    def issue_q(half):
        hb = half * 73728
        ins = []
        for i in range(6):
            ins.append(f"s_add_u32 m0, s78, {hb + 1024*i}")
            ins.append(f"s_add_u32 {sr(s_t1)}, {sr(s_xoff)}, {i*8*1280}")
            ins.append(f"buffer_load_dwordx4 {vr(VOX)}, {sr(sX,4)}, {sr(s_t1)} offen lds")
        for h in range(2):
            for sx in range(2):
                ins.append(f"s_add_u32 {sr(s_t1)}, {sr(s_woff)}, {h*384 + sx*32*12288}")
                for i in range(3):
                    ins.append(f"s_add_u32 m0, {sr(s_wlds)}, {hb + 24576 + (h*2+sx)*12288 + 1024*i}")
                    ins.append("s_nop 0")
                    ins.append(f"buffer_load_dwordx4 {vr(VOW+i)}, {sr(sW,4)}, {sr(s_t1)} offen lds")
        ins += [f"s_add_u32 {sr(s_xoff)}, {sr(s_xoff)}, 128", f"s_add_u32 {sr(s_woff)}, {sr(s_woff)}, {64*12288}"]
        return ins

    for ins in issue_q(0) + issue_q(1):
        e(ins)
    for i in range(256):
        e(f"v_accvgpr_write_b32 {ar(i)}, 0")
    A2V = 72
    for i in range(32):
        e(f"v_mov_b32 {vr(A2V+i)}, 0")
    XF = 104

    def accreg(h, a):
        if h == 0:
            return ar(a, 4)
        return ar(144 + a, 4) if a < 112 else vr(A2V + a - 112, 4)

    def q_body(half, issue, wait):
        hb = half * 73728
        e(f"s_waitcnt vmcnt({wait})")
        e("s_barrier")
        for sx in range(2):
            for qt in range(3):
                e(f"ds_read_b128 {vr(XF+(sx*3+qt)*4,4)}, {vr(XAB+sx)} offset:{hb + 2048*qt}" if hb + 2048 * qt < 65536 else
                  f"ds_read_b128 {vr(XF+(sx*3+qt)*4,4)}, {vr(KAC+sx)} offset:{2048*qt}")
        groups = []
        for sx in range(2):
            for h in range(2):
                ub = 24576 + (h * 2 + sx) * 12288
                for dt in range(12):
                    imm = ub + 128 * (dt >> 2)
                    reads = [(0, 2, "ds_read_b64_tr_b16 {dst}, " + f"{vr(VAC+(dt&3))} offset:{imm}"),
                             (2, 2, "ds_read_b64_tr_b16 {dst}, " + f"{vr(VAC+(dt&3))} offset:{imm+1536}")]
                    mf = []
                    for qt in range(3):
                        a = accreg(h, (dt * 3 + qt) * 4)
                        mf.append(lambda b, a=a, x=XF + (sx * 3 + qt) * 4: f"v_mfma_f32_16x16x32_bf16 {a}, {vr(b,4)}, {vr(x,4)}, {a}")
                    groups.append((reads, mf))
        ms = mfma_stream(groups, BUFS, LA)
        merge(e, ms, issue, 0, 100)

    def set_half(half):
        hb = half * 73728
        for i in range(4):
            e(f"v_add_u32 {vr(VAC+i)}, {hb}, {vr(WAB+i)}")
        for sx in range(2):
            e(f"v_add_u32 {vr(KAC+sx)}, {hb}, {vr(XAB+sx)}")

    stamp()
    set_half(0)
    q_body(0, [], 18)
    e(f"s_mov_b32 {sr(s_n)}, 0")
    e.label("L_k1_q1")
    set_half(1)
    q_body(1, issue_q(0), 0)
    set_half(0)
    q_body(0, issue_q(1), 0)
    e(f"s_add_u32 {sr(s_n)}, {sr(s_n)}, 1")
    e(f"s_cmp_lt_u32 {sr(s_n)}, 4")
    e("s_cbranch_scc1 L_k1_q1")
    set_half(1)
    q_body(1, issue_kk() + issue_vk() + issue_vk(), 0)

    stamp()
    e("s_nop 7")

    def conv_q(h):
        for Gd in range(6):
            for qt in range(3):
                qa = QF + (Gd * 3 + qt) * 4
                for half in range(2):
                    a = ((2 * Gd + half) * 3 + qt) * 4
                    for r in range(4):
                        if h == 1 and a >= 112:
                            e(f"v_mul_f32 {vr(T+4*half+r)}, {sr(s_c)}, {vr(A2V+a-112+r)}")
                        else:
                            e(f"v_accvgpr_read_b32 {vr(T+4*half+r)}, {ar((144 if h else 0)+a+r)}")
                for half in range(2):
                    a = ((2 * Gd + half) * 3 + qt) * 4
                    if not (h == 1 and a >= 112):
                        for r in range(4):
                            e(f"v_mul_f32 {vr(T+4*half+r)}, {sr(s_c)}, {vr(T+4*half+r)}")
                e(f"v_cvt_pk_bf16_f32 {vr(qa)}, {vr(T)}, {vr(T+1)}")
                e(f"v_cvt_pk_bf16_f32 {vr(qa+1)}, {vr(T+2)}, {vr(T+3)}")
                e(f"v_cvt_pk_bf16_f32 {vr(qa+2)}, {vr(T+4)}, {vr(T+5)}")
                e(f"v_cvt_pk_bf16_f32 {vr(qa+3)}, {vr(T+6)}, {vr(T+7)}")
                e("s_nop 1")
                e(f"v_permlane32_swap_b32 {vr(qa)}, {vr(qa+2)}")
                e(f"v_permlane32_swap_b32 {vr(qa+1)}, {vr(qa+3)}")
                e("s_nop 1")
                e(f"v_permlane16_swap_b32 {vr(qa)}, {vr(qa+2)}")
                e(f"v_permlane16_swap_b32 {vr(qa+1)}, {vr(qa+3)}")
    conv_q(1)
    for i in range(72):
        e(f"v_accvgpr_write_b32 {ar(144+i)}, {vr(QF+i)}")
    conv_q(0)
    e(f"s_mov_b32 {sr(s_cur)}, 0")
    e.label("L_k1_head")
    for i in range(144):
        e(f"v_accvgpr_write_b32 {ar(i)}, 0")
    for qt in range(3):
        for i in range(4):
            e(f"v_mov_b32 {vr(NEGM+4*qt+i)}, 0")
        e(f"v_mov_b32 {vr(LS+qt)}, 0")
        e(f"v_mov_b32 {vr(AL+qt)}, 1.0")
    s_floor = 86
    e(f"s_mov_b32 {sr(s_floor)}, 0xff800000")

    def qk_groups(sbuf, kaddr, koff):
        groups = []
        for kt in range(2):
            for t in range(6):
                imm = 128 * (t >> 1) + 6144 * kt + koff
                reads = [(0, 4, "ds_read_b128 {dst}, " + f"{vr(kaddr+(t&1))} offset:{imm}")]
                mf = []
                for qt in range(3):
                    d = SB + 24 * sbuf + (kt * 3 + qt) * 4
                    c = vr(NEGM + 4 * qt, 4) if t == 0 else vr(d, 4)
                    mf.append(lambda b, d=d, c=c, t=t, qt=qt:
                              f"v_mfma_f32_16x16x32_bf16 {vr(d,4)}, {vr(b,4)}, {vr(QF+(t*3+qt)*4,4)}, {c}")
                groups.append((reads, mf))
        return groups

    def pv_groups(pbuf):
        groups = []
        for dt in range(12):
            imm = 128 * (dt >> 2)
            reads = [(0, 2, "ds_read_b64_tr_b16 {dst}, " + f"{vr(VAC+(dt&3))} offset:{imm}"),
                     (2, 2, "ds_read_b64_tr_b16 {dst}, " + f"{vr(VAC+(dt&3))} offset:{imm+6144}")]
            mf = []
            for qt in range(3):
                a = (dt * 3 + qt) * 4
                p = PB + 12 * pbuf + 4 * qt
                mf.append(lambda b, a=a, p=p: f"v_mfma_f32_16x16x32_bf16 {ar(a,4)}, {vr(b,4)}, {vr(p,4)}, {ar(a,4)}")
            groups.append((reads, mf))
        return groups

    slow_blocks = []

    def sm_list(buf, force=False):
        if "nocomp" in EXP:
            return [], []
        lab = e.newlabel("k1_sm")
        SUM = T

        def sreg(qt, i):
            return SB + 24 * buf + ((i >> 2) * 3 + qt) * 4 + (i & 3)

        def ereg(qt, i):
            return EB + qt * 8 + i

        def exps_sums():
            r = []
            for qt in range(3):
                for i in range(8):
                    r.append(f"v_exp_f32 {vr(ereg(qt,i))}, {vr(sreg(qt,i))}")
            for qt in range(3):
                r.append(f"v_add_f32 {vr(SUM+qt)}, {vr(ereg(qt,0))}, {vr(ereg(qt,1))}")
            for i in range(2, 8):
                for qt in range(3):
                    r.append(f"v_add_f32 {vr(SUM+qt)}, {vr(SUM+qt)}, {vr(ereg(qt,i))}")
            return r
        sb = []
        MX, tt = T + 3, T + 6
        for qt in range(3):
            sb.append(f"v_max3_f32 {vr(MX+qt)}, {vr(sreg(qt,0))}, {vr(sreg(qt,1))}, {vr(sreg(qt,2))}")
            sb.append(f"v_max3_f32 {vr(MX+qt)}, {vr(MX+qt)}, {vr(sreg(qt,3))}, {vr(sreg(qt,4))}")
            sb.append(f"v_max3_f32 {vr(MX+qt)}, {vr(MX+qt)}, {vr(sreg(qt,5))}, {vr(sreg(qt,6))}")
            sb.append(f"v_max_f32 {vr(MX+qt)}, {vr(MX+qt)}, {vr(sreg(qt,7))}")
            sb.append(f"v_mov_b32 {vr(tt)}, {vr(MX+qt)}")
            sb.append("s_nop 1")
            sb.append(f"v_permlane32_swap_b32 {vr(MX+qt)}, {vr(tt)}")
            sb.append(f"v_max_f32 {vr(MX+qt)}, {vr(MX+qt)}, {vr(tt)}")
            sb.append(f"v_mov_b32 {vr(tt)}, {vr(MX+qt)}")
            sb.append("s_nop 1")
            sb.append(f"v_permlane16_swap_b32 {vr(MX+qt)}, {vr(tt)}")
            sb.append(f"v_max_f32 {vr(MX+qt)}, {vr(MX+qt)}, {vr(tt)}")
            sb.append(f"v_max_f32 {vr(MX+qt)}, {sr(s_floor)}, {vr(MX+qt)}")
            sb.append(f"v_sub_f32 {vr(tt)}, 0, {vr(MX+qt)}")
            sb.append(f"v_exp_f32 {vr(AL+qt)}, {vr(tt)}")
            for i in range(4):
                sb.append(f"v_sub_f32 {vr(NEGM+4*qt+i)}, {vr(NEGM+4*qt+i)}, {vr(MX+qt)}")
            for i in range(8):
                sb.append(f"v_sub_f32 {vr(sreg(qt,i))}, {vr(sreg(qt,i))}, {vr(MX+qt)}")
            sb.append(f"v_mul_f32 {vr(LS+qt)}, {vr(LS+qt)}, {vr(AL+qt)}")
        sb += exps_sums()
        sb.append(f"s_mov_b32 {sr(s_flag)}, 1")
        sb.append(f"s_mov_b32 {sr(s_floor)}, 0")
        if force:
            p1 = sb
        else:
            p1 = exps_sums()
            for qt in range(3):
                p1.append(f"v_cmp_gt_f32 {sr(sF+2*qt,2)}, {vr(SUM+qt)}, {sr(s_thr)}")
            p1.append(f"s_or_b64 {sr(sF,2)}, {sr(sF,2)}, {sr(sF+2,2)}")
            p1.append(f"s_or_b64 {sr(sF,2)}, {sr(sF,2)}, {sr(sF+4,2)}")
            p1.append(f"s_cbranch_scc1 {lab}_slow")
            p1.append(f"{lab}_ret:")
            slow_blocks.append([f"{lab}_slow:"] + sb + [f"s_branch {lab}_ret"])
        p2 = []
        for qt in range(3):
            p2.append(f"v_add_f32 {vr(LS+qt)}, {vr(LS+qt)}, {vr(SUM+qt)}")
        for qt in range(3):
            for i in range(4):
                p2.append(f"v_cvt_pk_bf16_f32 {vr(PB+12*buf+4*qt+i)}, {vr(ereg(qt,2*i))}, {vr(ereg(qt,2*i+1))}")
        return p1, p2

    def split_ms(ms, nm):
        cnt = 0
        for idx, (k, t) in enumerate(ms):
            if k == 'm':
                cnt += 1
                if cnt == nm:
                    return ms[:idx + 1], ms[idx + 1:]
        return ms, []

    def rescale_check():
        lab = e.newlabel("k1_rs")
        e(f"s_cmp_eq_u32 {sr(s_flag)}, 0")
        e(f"s_cbranch_scc1 {lab}_skip")
        e("s_nop 7")
        for base in range(0, 144, 8):
            for i in range(8):
                e(f"v_accvgpr_read_b32 {vr(T+i)}, {ar(base+i)}")
            for i in range(8):
                qt = ((base + i) // 4) % 3
                e(f"v_mul_f32 {vr(T+i)}, {vr(T+i)}, {vr(AL+qt)}")
            for i in range(8):
                e(f"v_accvgpr_write_b32 {ar(base+i)}, {vr(T+i)}")
        e(f"s_mov_b32 {sr(s_flag)}, 0")
        e("s_nop 1")
        e.label(f"{lab}_skip")

    def v_addr(sbase):
        return [f"v_add_u32 {vr(VAC+i)}, {sr(sbase)}, {vr(VAB+i)}" for i in range(4)]

    e(f"s_cmp_eq_u32 {sr(s_head)}, 0")
    e("s_cbranch_scc0 L_k1_ap1")
    e("s_waitcnt vmcnt(6)")
    e("s_barrier")
    for x in issue_vk() + issue_vk():
        e(x)
    e("s_branch L_k1_ap2")
    e.label("L_k1_ap1")
    e("s_waitcnt vmcnt(18)")
    e("s_barrier")
    e.label("L_k1_ap2")
    calc_nxt()
    for i in range(2):
        e(f"v_add_u32 {vr(KAC+i)}, {sr(s_cur)}, {vr(KAB+i)}")
    g0 = qk_groups(0, KAC, 0)
    g1 = qk_groups(1, KAC, 12288)
    ms = mfma_stream(g0 + g1, BUFS, LA, next_groups=pv_groups(0), addr_update=v_addr(s_nxt))
    m_a, m_b = split_ms(ms, 36)
    p1, p2 = sm_list(0, force=True)
    merge(e, m_a, issue_vk(), 0, 20)
    e("s_nop 7")
    for x in p1:
        e(x)
    e("s_nop 1")
    merge(e, m_b, p2)
    e(f"s_mov_b32 {sr(s_flag)}, 0")
    e(f"s_mov_b32 {sr(s_cur)}, {sr(s_nxt)}")

    def a_body(j_par, do_qk, do_sm, last=False, iss="vk", pre=None):
        e("s_waitcnt vmcnt(18)")
        e("s_barrier")
        calc_nxt()
        if pre:
            for x in pre:
                e(x)
        if do_qk:
            e(f"s_add_u32 {sr(s_t0)}, {sr(s_cur)}, 12288")
            for i in range(2):
                e(f"v_add_u32 {vr(KAC+i)}, {sr(s_t0)}, {vr(KAB+i)}")
        groups = pv_groups(j_par)
        if do_qk:
            groups += qk_groups(j_par, KAC, 0)
        ms = mfma_stream(groups, BUFS, LA, primed=True,
                         next_groups=None if last else pv_groups(1 - j_par),
                         addr_update=None if last else v_addr(s_nxt))
        side = issue_vk() if iss == "vk" else issue_kk()
        if do_sm:
            p1, p2 = sm_list(1 - j_par)
            if do_qk:
                m_a, m_b = split_ms(ms, 36)
                merge(e, m_a, p1, 0, 34)
                merge(e, m_b, side + p2)
            else:
                merge(e, ms, p1 + side + p2)
        else:
            merge(e, ms, side)
        if do_sm:
            if not do_qk:
                e("s_nop 7")
            rescale_check()
        e(f"s_mov_b32 {sr(s_cur)}, {sr(s_nxt)}")

    switch = [f"s_mov_b32 {sr(s_koff)}, 0", f"s_mov_b32 {sr(s_voff)}, 0",
              f"s_add_u32 {sr(sK)}, {sr(sK)}, 196608", f"s_addc_u32 {sr(sK+1)}, {sr(sK+1)}, 0",
              f"s_add_u32 {sr(sV)}, {sr(sV)}, 196608", f"s_addc_u32 {sr(sV+1)}, {sr(sV+1)}, 0",
              f"s_cmp_eq_u32 {sr(s_head)}, 0",
              f"s_cselect_b32 {sr(sK+2)}, {sr(sK+2)}, 0",
              f"s_cselect_b32 {sr(sV+2)}, {sr(sV+2)}, 0"]

    stamp()
    e(f"s_mov_b32 {sr(s_n)}, 0")
    e.label("L_k1_aloop")
    a_body(0, True, True)
    a_body(1, True, True)
    e(f"s_add_u32 {sr(s_n)}, {sr(s_n)}, 1")
    e(f"s_cmp_lt_u32 {sr(s_n)}, 5")
    e("s_cbranch_scc1 L_k1_aloop")
    a_body(0, True, True)
    a_body(1, True, True, iss="kk", pre=switch)
    a_body(0, True, True)
    a_body(1, True, True)
    a_body(0, False, True)
    a_body(1, False, False, last=True)

    stamp()
    tt = T + 8
    for qt in range(3):
        e(f"v_mov_b32 {vr(tt)}, {vr(LS+qt)}")
        e("s_nop 1")
        e(f"v_permlane32_swap_b32 {vr(LS+qt)}, {vr(tt)}")
        e(f"v_add_f32 {vr(LS+qt)}, {vr(LS+qt)}, {vr(tt)}")
        e(f"v_mov_b32 {vr(tt)}, {vr(LS+qt)}")
        e("s_nop 1")
        e(f"v_permlane16_swap_b32 {vr(LS+qt)}, {vr(tt)}")
        e(f"v_add_f32 {vr(LS+qt)}, {vr(LS+qt)}, {vr(tt)}")
        e(f"v_rcp_f32 {vr(LS+qt)}, {vr(LS+qt)}")
    e("s_nop 7")
    for qt in range(3):
        for Gd in range(6):
            qa = QF + (Gd * 3 + qt) * 4
            for half in range(2):
                a = ((2 * Gd + half) * 3 + qt) * 4
                for r in range(4):
                    e(f"v_accvgpr_read_b32 {vr(T+4*half+r)}, {ar(a+r)}")
            for i in range(8):
                e(f"v_mul_f32 {vr(T+i)}, {vr(T+i)}, {vr(LS+qt)}")
            for i in range(4):
                e(f"v_cvt_pk_bf16_f32 {vr(qa+i)}, {vr(T+2*i)}, {vr(T+2*i+1)}")
            e(f"s_movk_i32 s3, {Gd*2048}")
            e(f"buffer_store_dwordx4 {vr(qa,4)}, {vr(VOUT+qt)}, {sr(sO,4)}, s3 offen")
    for qt in range(3):
        e(f"v_add_u32 {vr(VOUT+qt)}, 12288, {vr(VOUT+qt)}")
    e("s_nop 1")
    for i in range(72):
        e(f"v_accvgpr_read_b32 {vr(QF+i)}, {ar(144+i)}")
    e(f"s_add_u32 {sr(s_head)}, {sr(s_head)}, 1")
    e(f"s_cmp_lt_u32 {sr(s_head)}, 2")
    e("s_cbranch_scc1 L_k1_head")
    e("s_waitcnt vmcnt(0)")
    stamp()
    if "stamp" in EXP:
        e("s_add_u32 s40, s36, 0xC800000")
        e("s_addc_u32 s41, s37, 0")
        e("s_mov_b32 s42, 0x100000")
        e("s_mov_b32 s43, 0x00020000")
        e("s_lshl_b32 s3, s2, 2")
        e(f"s_add_u32 s3, s3, {sr(s_w)}")
        e("s_lshl_b32 s3, s3, 6")
        e("v_mov_b32 v1, s3")
        for i in range(6):
            e(f"v_mov_b32 v2, s{88+2*i}")
            e(f"buffer_store_dword v2, v1, s[40:43], 0 offen offset:{4*i}")
        e("s_waitcnt vmcnt(0)")
    e.label("L_k1_end")
    e("s_endpgm")
    for sb in slow_blocks:
        for s in sb:
            if s.endswith(":"):
                e.label(s[:-1])
            else:
                e(s)


def gen_k2(e):
    ACC = 0
    FS = 8
    VOW = 56
    VOA = 57
    AB = 58
    BBs = 60
    AC = 61
    BC = 63
    VOP = 64
    T = 65
    sWO, sA, sP = 40, 44, 48
    s_blk, s_ks, s_rb, s_nc, s_w, s_wr, s_wc, s_mb, s_wooff, s_aoff, s_cur, s_nxt, s_n = range(60, 73)
    RING = 6
    STG = 24576
    NST = 48

    e.raw(".globl k2_kernel")
    e.raw(".p2align 8")
    e.raw(".type k2_kernel,@function")
    e.label("k2_kernel")
    e("s_cmp_ge_u32 s2, 240")
    e("s_cbranch_scc1 L_k2_end")
    e("s_load_dwordx2 s[16:17], s[0:1], 32")
    e("s_load_dwordx2 s[18:19], s[0:1], 72")
    e("s_load_dwordx2 s[36:37], s[0:1], 96")
    e("s_and_b32 s3, s2, 7")
    e(f"s_lshr_b32 {sr(s_blk)}, s3, 2")
    e(f"s_and_b32 {sr(s_ks)}, s3, 3")
    e("s_lshr_b32 s4, s2, 3")
    e("s_mul_i32 s5, s4, 52")
    e(f"s_lshr_b32 {sr(s_rb)}, s5, 8")
    e(f"s_mul_i32 s5, {sr(s_rb)}, 5")
    e(f"s_sub_u32 {sr(s_nc)}, s4, s5")
    e(f"v_lshrrev_b32 {vr(T)}, 6, v0")
    e("s_nop 0")
    e(f"v_readfirstlane_b32 {sr(s_w)}, {vr(T)}")
    e("s_waitcnt lgkmcnt(0)")
    e(f"s_lshr_b32 {sr(s_wr)}, {sr(s_w)}, 1")
    e(f"s_and_b32 {sr(s_wc)}, {sr(s_w)}, 1")
    e(f"s_cmp_eq_u32 {sr(s_blk)}, 0")
    e("s_cselect_b32 s4, s16, s18")
    e("s_cselect_b32 s5, s17, s19")
    e(f"s_mul_i32 s3, {sr(s_ks)}, {1536*1280}")
    e(f"s_lshl_b32 s6, {sr(s_nc)}, 8")
    e("s_add_u32 s3, s3, s6")
    e(f"s_add_u32 {sr(sWO)}, s4, s3")
    e(f"s_addc_u32 {sr(sWO+1)}, s5, 0")
    e(f"s_sub_u32 {sr(sWO+2)}, 7864320, s3")
    e(f"s_mov_b32 {sr(sWO+3)}, 0x00020000")
    e(f"s_mul_i32 s3, {sr(s_blk)}, 48")
    e(f"s_lshl_b32 s6, {sr(s_rb)}, 3")
    e("s_add_u32 s3, s3, s6")
    e("s_mul_i32 s3, s3, 393216")
    e(f"s_mul_i32 s6, {sr(s_ks)}, {96*1024}")
    e("s_add_u32 s3, s3, s6")
    e(f"s_add_u32 {sr(sA)}, s36, s3")
    e(f"s_addc_u32 {sr(sA+1)}, s37, 0")
    e(f"s_sub_u32 {sr(sA+2)}, {8*393216}, s6")
    e(f"s_mov_b32 {sr(sA+3)}, 0x00020000")
    e(f"s_mul_i32 s3, {sr(s_ks)}, 60")
    e(f"s_mul_i32 s6, {sr(s_blk)}, 30")
    e("s_add_u32 s3, s3, s6")
    e(f"s_mul_i32 s6, {sr(s_rb)}, 5")
    e("s_add_u32 s3, s3, s6")
    e(f"s_add_u32 s3, s3, {sr(s_nc)}")
    e("s_lshl_b32 s3, s3, 17")
    e(f"s_add_u32 s3, s3, {WS_P_OFF}")
    e(f"s_add_u32 {sr(sP)}, s36, s3")
    e(f"s_addc_u32 {sr(sP+1)}, s37, 0")
    e(f"s_mov_b32 {sr(sP+2)}, 131072")
    e(f"s_mov_b32 {sr(sP+3)}, 0x00020000")

    LANE, HH, GP, R, C = 1, 2, 3, 4, 5
    t0, t1, t2, t3 = T, T + 1, T + 2, T + 3
    e(f"v_and_b32 {vr(LANE)}, 63, v0")
    e(f"v_lshrrev_b32 {vr(HH)}, 5, {vr(LANE)}")
    e(f"v_bfe_u32 {vr(GP)}, {vr(LANE)}, 4, 1")
    e(f"v_bfe_u32 {vr(R)}, {vr(LANE)}, 2, 2")
    e(f"v_and_b32 {vr(C)}, 3, {vr(LANE)}")
    e(f"v_lshrrev_b32 {vr(t0)}, 4, {vr(LANE)}")
    e(f"v_and_b32 {vr(t1)}, 15, {vr(LANE)}")
    e(f"v_lshlrev_b32 {vr(t2)}, 2, {vr(t0)}")
    e(f"v_xor_b32 {vr(t1)}, {vr(t1)}, {vr(t2)}")
    e(f"v_lshlrev_b32 {vr(t1)}, 4, {vr(t1)}")
    e(f"v_mul_u32_u24 {vr(t0)}, 1280, {vr(t0)}")
    e(f"s_mul_i32 s3, {sr(s_w)}, {8*1280}")
    e(f"v_add3_u32 {vr(VOW)}, {vr(t0)}, {vr(t1)}, s3")
    e(f"s_mul_i32 s3, {sr(s_w)}, {2*393216}")
    e(f"v_lshlrev_b32 {vr(VOA)}, 4, {vr(LANE)}")
    e(f"v_add_u32 {vr(VOA)}, s3, {vr(VOA)}")
    e(f"v_lshlrev_b32 {vr(t0)}, 2, {vr(HH)}")
    e(f"v_add_u32 {vr(t0)}, {vr(t0)}, {vr(R)}")
    e(f"v_lshlrev_b32 {vr(t0)}, 8, {vr(t0)}")
    e(f"v_and_b32 {vr(t1)}, 1, {vr(C)}")
    e(f"v_lshlrev_b32 {vr(t1)}, 3, {vr(t1)}")
    e(f"v_add_u32 {vr(t0)}, {vr(t0)}, {vr(t1)}")
    e(f"v_lshlrev_b32 {vr(t2)}, 2, {vr(R)}")
    e(f"s_lshl_b32 s3, {sr(s_wc)}, 3")
    for nt in range(2):
        e(f"v_lshrrev_b32 {vr(t1)}, 1, {vr(C)}")
        e(f"v_lshl_add_u32 {vr(t1)}, {vr(GP)}, 1, {vr(t1)}")
        e(f"v_add3_u32 {vr(t1)}, {vr(t1)}, s3, {4*nt}")
        e(f"v_xor_b32 {vr(t1)}, {vr(t1)}, {vr(t2)}")
        e(f"v_lshlrev_b32 {vr(t1)}, 4, {vr(t1)}")
        e(f"v_add3_u32 {vr(AB+nt)}, {vr(t0)}, {vr(t1)}, 0")
        e(f"v_add_u32 {vr(AB+nt)}, 16384, {vr(AB+nt)}")
    e(f"s_lshl_b32 s3, {sr(s_wr)}, 13")
    e(f"v_lshlrev_b32 {vr(BBs)}, 4, {vr(LANE)}")
    e(f"v_add_u32 {vr(BBs)}, s3, {vr(BBs)}")
    e(f"s_lshl_b32 s3, {sr(s_w)}, 15")
    e(f"v_lshlrev_b32 {vr(VOP)}, 4, {vr(LANE)}")
    e(f"v_add_u32 {vr(VOP)}, s3, {vr(VOP)}")

    def issue():
        ins = []
        for i in range(4):
            ins.append(f"s_add_u32 m0, {sr(s_mb)}, {1024*i}")
            ins.append(f"s_add_u32 s3, {sr(s_aoff)}, {(i>>1)*393216 + (i&1)*1024}")
            ins.append(f"buffer_load_dwordx4 {vr(VOA)}, {sr(sA,4)}, s3 offen lds")
        for i in range(2):
            ins.append(f"s_add_u32 m0, s78, {1024*i}")
            ins.append(f"s_add_u32 s3, {sr(s_wooff)}, {i*4*1280}")
            ins.append(f"buffer_load_dwordx4 {vr(VOW)}, {sr(sWO,4)}, s3 offen lds")
        ins += [f"s_add_u32 {sr(s_aoff)}, {sr(s_aoff)}, 2048",
                f"s_add_u32 {sr(s_wooff)}, {sr(s_wooff)}, {32*1280}",
                f"s_add_u32 {sr(s_mb)}, {sr(s_mb)}, {STG}",
                f"s_cmp_ge_u32 {sr(s_mb)}, {RING*STG}",
                f"s_cselect_b32 {sr(s_mb)}, s76, {sr(s_mb)}",
                f"s_add_u32 s78, {sr(s_mb)}, s77"]
        return ins

    e(f"s_lshl_b32 s76, {sr(s_w)}, 12")
    e(f"s_lshl_b32 s77, {sr(s_w)}, 11")
    e("s_sub_u32 s77, 16384, s77")
    e(f"s_mov_b32 {sr(s_mb)}, s76")
    e(f"s_add_u32 s78, {sr(s_mb)}, s77")
    e(f"s_mov_b32 {sr(s_aoff)}, 0")
    e(f"s_mov_b32 {sr(s_wooff)}, 0")
    e(f"s_mov_b32 {sr(s_cur)}, 0")
    e(f"s_mov_b32 {sr(s_n)}, 0")
    for _ in range(RING - 1):
        for ins in issue():
            e(ins)
    for i in range(128):
        e(f"v_accvgpr_write_b32 {ar(ACC+i)}, 0")

    def reads(ks, fs):
        b = FS + 24 * fs
        r = []
        for nt in range(2):
            r.append(f"ds_read_b64_tr_b16 {vr(b+4*nt,2)}, {vr(AC+nt)} offset:{2048*ks}")
            r.append(f"ds_read_b64_tr_b16 {vr(b+4*nt+2,2)}, {vr(AC+nt)} offset:{2048*ks+4096}")
        for qt in range(4):
            r.append(f"ds_read_b128 {vr(b+8+4*qt,4)}, {vr(BC)} offset:{2048*qt+1024*ks}")
        return r

    def mfmas(fs):
        b = FS + 24 * fs
        m = []
        for qt in range(4):
            for nt in range(2):
                a = ACC + (qt * 2 + nt) * 16
                m.append(f"v_mfma_f32_32x32x16_bf16 {ar(a,16)}, {vr(b+4*nt,4)}, {vr(b+8+4*qt,4)}, {ar(a,16)}")
        return m

    def addr(sb):
        return [f"v_add_u32 {vr(AC)}, {sr(sb)}, {vr(AB)}", f"v_add_u32 {vr(AC+1)}, {sr(sb)}, {vr(AB+1)}",
                f"v_add_u32 {vr(BC)}, {sr(sb)}, {vr(BBs)}"]

    def inter(m, side):
        k = 0
        for i, x in enumerate(m):
            e(x)
            tgt = ((i + 1) * len(side) + len(m) - 1) // len(m)
            while k < tgt:
                e(side[k])
                k += 1

    def stage(first=False, last=False):
        e("s_waitcnt vmcnt(18)")
        e("s_barrier")
        e(f"s_add_u32 {sr(s_nxt)}, {sr(s_cur)}, {STG}")
        e(f"s_cmp_eq_u32 {sr(s_nxt)}, {RING*STG}")
        e(f"s_cselect_b32 {sr(s_nxt)}, 0, {sr(s_nxt)}")
        if first:
            for x in addr(s_cur) + reads(0, 0):
                e(x)
        e("s_waitcnt lgkmcnt(0)")
        iss = issue()
        h = len(iss) // 2
        inter(mfmas(0), reads(1, 1) + iss[:h])
        e("s_waitcnt lgkmcnt(0)")
        inter(mfmas(1), ([] if last else addr(s_nxt) + reads(0, 0)) + iss[h:])
        e(f"s_mov_b32 {sr(s_cur)}, {sr(s_nxt)}")

    stage(first=True)
    e.label("L_k2_loop")
    stage()
    e(f"s_add_u32 {sr(s_n)}, {sr(s_n)}, 1")
    e(f"s_cmp_lt_u32 {sr(s_n)}, {NST-2}")
    e("s_cbranch_scc1 L_k2_loop")
    stage(last=True)
    e("s_nop 15")
    for i in range(32):
        e(f"s_movk_i32 s3, {1024*i}")
        e(f"buffer_store_dwordx4 {ar(ACC+4*i,4)}, {vr(VOP)}, {sr(sP,4)}, s3 offen")
    e("s_waitcnt vmcnt(0)")
    e.label("L_k2_end")
    e("s_endpgm")


def gen_k3(e):
    e.raw(".globl k3_kernel")
    e.raw(".p2align 8")
    e.raw(".type k3_kernel,@function")
    e.label("k3_kernel")
    e("s_cmp_ge_u32 s2, 1920")
    e("s_cbranch_scc1 L_k3_end")
    e("s_load_dwordx2 s[4:5], s[0:1], 80")
    e("s_load_dwordx2 s[6:7], s[0:1], 96")
    e("s_waitcnt lgkmcnt(0)")
    e("s_mov_b32 s8, s4")
    e("s_mov_b32 s9, s5")
    e("s_mov_b32 s10, 3932160")
    e("s_mov_b32 s11, 0x00020000")
    e(f"s_add_u32 s12, s6, {WS_P_OFF}")
    e("s_addc_u32 s13, s7, 0")
    e("s_mov_b32 s14, 31457280")
    e("s_mov_b32 s15, 0x00020000")
    e("s_lshl_b32 s16, s2, 12")
    e("v_lshlrev_b32 v2, 4, v0")
    e("v_add_u32 v2, s16, v2")
    for ks in range(4):
        e(f"s_mov_b32 s19, {ks*60*131072}")
        e(f"buffer_load_dwordx4 v[{8+4*ks}:{11+4*ks}], v2, s[12:15], s19 offen")
    e("s_lshr_b32 s17, s2, 5")
    e("s_cmp_ge_u32 s17, 30")
    e("s_cselect_b32 s18, 1, 0")
    e("s_mul_i32 s20, s18, 30")
    e("s_sub_u32 s17, s17, s20")
    e("s_mul_i32 s20, s17, 52")
    e("s_lshr_b32 s20, s20, 8")
    e("s_mul_i32 s21, s20, 5")
    e("s_sub_u32 s21, s17, s21")
    e("s_bfe_u32 s22, s2, 0x20003")
    e("s_and_b32 s23, s2, 7")
    e("s_lshr_b32 s24, s23, 1")
    e("s_and_b32 s25, s23, 1")
    e("s_lshr_b32 s26, s22, 1")
    e("s_and_b32 s27, s22, 1")
    e("s_lshl_b32 s28, s20, 8")
    e("s_lshl_b32 s29, s26, 7")
    e("s_add_u32 s28, s28, s29")
    e("s_lshl_b32 s29, s24, 5")
    e("s_add_u32 s28, s28, s29")
    e("s_mul_i32 s30, s18, 640")
    e("s_lshl_b32 s29, s21, 7")
    e("s_add_u32 s30, s30, s29")
    e("s_lshl_b32 s29, s27, 6")
    e("s_add_u32 s30, s30, s29")
    e("s_lshl_b32 s29, s25, 5")
    e("s_add_u32 s30, s30, s29")
    e("v_and_b32 v3, 31, v0")
    e("v_add_u32 v3, s28, v3")
    e("v_mul_u32_u24 v3, 2560, v3")
    e("v_lshrrev_b32 v4, 6, v0")
    e("v_lshlrev_b32 v4, 3, v4")
    e("v_bfe_u32 v5, v0, 5, 1")
    e("v_lshl_add_u32 v4, v5, 2, v4")
    e("v_add_u32 v4, s30, v4")
    e("v_lshl_add_u32 v3, v4, 1, v3")
    e("s_waitcnt vmcnt(0)")
    for i in range(4):
        e(f"v_add_f32 v{8+i}, v{8+i}, v{12+i}")
        e(f"v_add_f32 v{16+i}, v{16+i}, v{20+i}")
    for i in range(4):
        e(f"v_add_f32 v{8+i}, v{8+i}, v{16+i}")
    e("v_cvt_pk_bf16_f32 v24, v8, v9")
    e("v_cvt_pk_bf16_f32 v25, v10, v11")
    e("buffer_store_dwordx2 v[24:25], v3, s[8:11], 0 offen")
    e("s_waitcnt vmcnt(0)")
    e.label("L_k3_end")
    e("s_endpgm")


def desc2(name, nfv, acc, sgpr=96):
    return f""".amdhsa_kernel {name}
  .amdhsa_next_free_vgpr {nfv}
  .amdhsa_next_free_sgpr {sgpr}
  .amdhsa_accum_offset {acc}
  .amdhsa_group_segment_fixed_size 0
  .amdhsa_kernarg_size 104
  .amdhsa_user_sgpr_count 2
  .amdhsa_user_sgpr_kernarg_segment_ptr 1
  .amdhsa_system_sgpr_workgroup_id_x 1
.end_amdhsa_kernel
"""


def main():
    e = Emitter()
    out = HEADER
    out += "; @launch kernel=k1_kernel grid=(256,1,1) block=(256,1,1) lds=147456\n"
    out += "; @launch kernel=k2_kernel grid=(240,1,1) block=(256,1,1) lds=147456\n"
    out += "; @launch kernel=k3_kernel grid=(1920,1,1) block=(256,1,1) lds=0\n"
    out += '.amdgcn_target "amdgcn-amd-amdhsa--gfx950"\n.text\n'
    gen_k1(e)
    gen_k2(e)
    gen_k3(e)
    out += e.text()
    out += '.section .rodata,"a"\n.p2align 6\n'
    out += desc2("k1_kernel", 512, 256, 102)
    out += ".p2align 6\n" + desc2("k2_kernel", 72+128, 72)
    out += ".p2align 6\n" + desc("k3_kernel", 32)
    path = sys.argv[1] if len(sys.argv) > 1 else f"cdna_kernels/{NAME}.s"
    open(path, "w").write(out)


if __name__ == "__main__":
    main()
```

```python
import math
import struct
import sys
import os
EXP = os.environ.get("EXP", "")
QSPAN = int(os.environ.get("QSPAN", "100"))
ST1 = os.environ.get("ST1", "")
ST2 = os.environ.get("ST2", "")

from gen import HEADER, NAME, WS_P_OFF, Emitter, vr, sr, desc


def ar(a, n=1):
    return f"a{a}" if n == 1 else f"a[{a}:{a+n-1}]"


def f32bits(x):
    return struct.unpack("<I", struct.pack("<f", x))[0]


def mfma_stream(groups, bufs, lookahead, primed=False, next_groups=None, addr_update=None, pre_out=0):
    out = []
    if "nocomp" in EXP:
        return [('m', 's_nop 0') for _ in range(sum(len(g[1]) for g in groups))]
    nb = len(bufs)
    assert lookahead < nb
    allg = list(groups) + (list(next_groups[:lookahead]) if next_groups else [])
    if next_groups:
        assert len(groups) % nb == 0
    issued = 0
    last = {}

    def issue(o, emit=True):
        nonlocal issued
        b = bufs[o % nb]
        if o == len(groups) and emit and addr_update:
            for t in addr_update:
                out.append(('i', t))
                if t.startswith("ds_read"):
                    issued += 1
        for (roff, rn, fmt) in allg[o][0]:
            if emit:
                out.append(('i', fmt.format(dst=vr(b + roff, rn))))
            issued += 1
        last[o] = issued
    nxt = 0
    while nxt < min(lookahead, len(allg)):
        issue(nxt, emit=not primed)
        nxt += 1
    for o, (reads, mf) in enumerate(groups):
        if nxt < len(allg):
            issue(nxt)
            nxt += 1
        n = issued - last[o]
        assert n <= 15, n
        out.append(('i', f"s_waitcnt lgkmcnt({n})"))
        for fn in mf:
            out.append(('m', fn(bufs[o % nb])))
    return out


def merge(e, ms, side, start=0, end=None):
    nm = sum(1 for k, _ in ms if k == 'm')
    if end is None:
        end = nm
    span = max(1, end - start)
    ns = len(side)
    mi = 0
    si = 0
    for k, t in ms:
        e(t)
        if k == 'm':
            if mi >= start:
                tgt = min(ns, ((mi - start + 1) * ns + span - 1) // span)
                while si < tgt or (si < ns and side[si].endswith(":")):
                    s = side[si]
                    if s.endswith(":"):
                        e.label(s[:-1])
                    else:
                        e(s)
                    si += 1
            mi += 1
    while si < ns:
        s = side[si]
        if s.endswith(":"):
            e.label(s[:-1])
        else:
            e(s)
        si += 1


def gen_k1(e):
    QF = 0
    SB = 72
    PB = 120
    BUFS = [144 + 4 * i for i in range(6)]
    NEGM = 168
    KAB, VAB, KAC, VAC = 180, 182, 186, 188
    WAB, XAB = 192, 204
    VOKV, VOW, VOX = 197, 200, 203
    LS, AL = 206, 209
    T = 212
    VOUT = 224
    EB = 228

    sX, sW, sK, sV, sO = 40, 44, 48, 52, 56
    s_n, s_cur, s_iss, s_xoff, s_woff, s_koff, s_voff, s_wlds, s_t0, s_t1, s_c, s_thr, s_flag = range(60, 73)
    s_b, s_h, s_blk, s_w = 73, 74, 75, 76
    sF = 80

    c2 = (192 ** -0.5) * math.log2(math.e)
    stamp_n = [0]

    def stamp():
        if "stamp" in EXP:
            e(f"s_memtime s[{88+2*stamp_n[0]}:{89+2*stamp_n[0]}]")
            e("s_waitcnt lgkmcnt(0)")
            stamp_n[0] += 1

    e.raw(".globl k1_kernel")
    e.raw(".p2align 8")
    e.raw(".type k1_kernel,@function")
    e.label("k1_kernel")
    e("s_cmp_ge_u32 s2, 256")
    e("s_cbranch_scc1 L_k1_end")
    stamp()
    e("s_load_dwordx16 s[16:31], s[0:1], 0")
    e("s_load_dwordx4 s[32:35], s[0:1], 64")
    e("s_load_dwordx2 s[36:37], s[0:1], 96")
    e("s_and_b32 s3, s2, 7")
    e("s_lshr_b32 s4, s2, 3")
    e(f"s_and_b32 {sr(s_b)}, s4, 7")
    e("s_lshr_b32 s4, s4, 3")
    e("s_lshl_b32 s4, s4, 1")
    e("s_lshl_b32 s3, s3, 3")
    e("s_add_u32 s3, s3, s4")
    e(f"s_lshr_b32 {sr(s_blk)}, s3, 5")
    e(f"s_and_b32 {sr(s_h)}, s3, 31")
    e(f"v_lshrrev_b32 {vr(T)}, 6, v0")
    e("s_nop 0")
    e(f"v_readfirstlane_b32 {sr(s_w)}, {vr(T)}")
    e("s_waitcnt lgkmcnt(0)")
    e(f"s_cmp_eq_u32 {sr(s_blk)}, 0")
    for i, (a, b) in enumerate(((16, 26), (17, 27), (18, 28), (19, 29), (20, 30), (21, 31), (22, 32), (23, 33))):
        e(f"s_cselect_b32 s{4+i}, s{a}, s{b}")
    e(f"s_mul_i32 s3, {sr(s_b)}, 245760")
    e(f"s_add_u32 {sr(sX)}, s4, s3")
    e(f"s_addc_u32 {sr(sX+1)}, s5, 0")
    e(f"s_mov_b32 {sr(sX+2)}, 245760")
    e(f"s_mov_b32 {sr(sX+3)}, 0x00020000")
    e(f"s_mul_i32 s3, {sr(s_h)}, 384")
    e(f"s_add_u32 {sr(sW)}, s10, s3")
    e(f"s_addc_u32 {sr(sW+1)}, s11, 0")
    e(f"s_sub_u32 {sr(sW+2)}, 7864320, s3")
    e(f"s_mov_b32 {sr(sW+3)}, 0x00020000")
    e(f"s_lshl_b32 s3, {sr(s_b)}, 5")
    e(f"s_add_u32 s3, s3, {sr(s_h)}")
    e("s_mul_i32 s3, s3, 196608")
    e(f"s_add_u32 {sr(sK)}, s6, s3")
    e(f"s_addc_u32 {sr(sK+1)}, s7, 0")
    e(f"s_mov_b32 {sr(sK+2)}, 196608")
    e(f"s_mov_b32 {sr(sK+3)}, 0x00020000")
    e(f"s_add_u32 {sr(sV)}, s8, s3")
    e(f"s_addc_u32 {sr(sV+1)}, s9, 0")
    e(f"s_mov_b32 {sr(sV+2)}, 196608")
    e(f"s_mov_b32 {sr(sV+3)}, 0x00020000")
    e(f"s_lshl_b32 s3, {sr(s_blk)}, 3")
    e(f"s_add_u32 s3, s3, {sr(s_b)}")
    e("s_mul_i32 s3, s3, 2359296")
    e(f"s_add_u32 {sr(sO)}, s36, s3")
    e(f"s_addc_u32 {sr(sO+1)}, s37, 0")
    e(f"s_mov_b32 {sr(sO+2)}, 2359296")
    e(f"s_mov_b32 {sr(sO+3)}, 0x00020000")
    e(f"s_mul_i32 {sr(s_wlds)}, {sr(s_w)}, 3072")

    LANE, G, L15, R, C = 1, 2, 3, 4, 5
    t0, t1, t2, t3, t4 = T, T + 1, T + 2, T + 3, T + 4
    e(f"v_and_b32 {vr(LANE)}, 63, v0")
    e(f"v_lshrrev_b32 {vr(G)}, 4, {vr(LANE)}")
    e(f"v_and_b32 {vr(L15)}, 15, {vr(LANE)}")
    e(f"v_bfe_u32 {vr(R)}, {vr(LANE)}, 2, 2")
    e(f"v_and_b32 {vr(C)}, 3, {vr(LANE)}")
    e("s_movk_i32 s3, 2731")
    e(f"s_lshl_b32 s4, {sr(s_w)}, 3")
    for i in range(3):
        e(f"v_add_u32 {vr(t0)}, {64*i}, {vr(LANE)}")
        e(f"v_mul_lo_u32 {vr(t1)}, {vr(t0)}, s3")
        e(f"v_lshrrev_b32 {vr(t1)}, 16, {vr(t1)}")
        e(f"v_mul_u32_u24 {vr(t2)}, 24, {vr(t1)}")
        e(f"v_sub_u32 {vr(t0)}, {vr(t0)}, {vr(t2)}")
        e(f"v_add_u32 {vr(t1)}, s4, {vr(t1)}")
        e(f"v_and_b32 {vr(t2)}, {0 if 'noswz' in EXP else 6}, {vr(t1)}")
        e(f"v_xor_b32 {vr(t2)}, {vr(t0)}, {vr(t2)}")
        e(f"v_lshlrev_b32 {vr(t2)}, 4, {vr(t2)}")
        e(f"v_mul_u32_u24 {vr(t3)}, 384, {vr(t1)}")
        e(f"v_add_u32 {vr(VOKV+i)}, {vr(t2)}, {vr(t3)}")
        e(f"v_and_b32 {vr(t2)}, 2, {vr(t1)}")
        e(f"v_bfe_u32 {vr(t3)}, {vr(t1)}, 3, 1")
        e(f"v_lshlrev_b32 {vr(t3)}, 2, {vr(t3)}")
        e(f"v_or_b32 {vr(t2)}, {vr(t2)}, {vr(t3)}")
        if 'noswz' in EXP:
            e(f"v_mov_b32 {vr(t2)}, 0")
        e(f"v_xor_b32 {vr(t2)}, {vr(t0)}, {vr(t2)}")
        e(f"v_lshlrev_b32 {vr(t2)}, 4, {vr(t2)}")
        e(f"v_mul_u32_u24 {vr(t3)}, 12288, {vr(t1)}")
        e(f"v_add_u32 {vr(VOW+i)}, {vr(t2)}, {vr(t3)}")
    e(f"v_lshrrev_b32 {vr(t0)}, 3, {vr(LANE)}")
    e(f"v_and_b32 {vr(t1)}, 6, {vr(t0)}")
    e(f"v_and_b32 {vr(t2)}, 7, {vr(LANE)}")
    e(f"v_xor_b32 {vr(t1)}, {vr(t2)}, {vr(t1)}")
    e(f"v_lshlrev_b32 {vr(t1)}, 4, {vr(t1)}")
    e(f"v_mul_u32_u24 {vr(t0)}, 1280, {vr(t0)}")
    e(f"s_mul_i32 s4, {sr(s_w)}, {48*1280}")
    e(f"v_add3_u32 {vr(VOX)}, {vr(t0)}, {vr(t1)}, s4")
    e(f"v_and_b32 {vr(t2)}, 6, {vr(L15)}")
    e(f"v_mul_u32_u24 {vr(t3)}, 384, {vr(L15)}")
    for tp in range(2):
        e(f"v_add_u32 {vr(t0)}, {4*tp}, {vr(G)}")
        e(f"v_xor_b32 {vr(t0)}, {vr(t0)}, {vr(t2)}")
        e(f"v_lshlrev_b32 {vr(t0)}, 4, {vr(t0)}")
        e(f"v_add3_u32 {vr(KAB+tp)}, {vr(t0)}, {vr(t3)}, 0")
    e(f"v_lshlrev_b32 {vr(t4)}, 2, {vr(G)}")
    e(f"v_add_u32 {vr(t4)}, {vr(t4)}, {vr(R)}")
    e(f"v_and_b32 {vr(t2)}, 6, {vr(t4)}")
    e(f"v_mul_u32_u24 {vr(t3)}, 384, {vr(t4)}")
    e(f"v_and_b32 {vr(t1)}, 1, {vr(C)}")
    e(f"v_lshlrev_b32 {vr(t1)}, 3, {vr(t1)}")
    e(f"v_add_u32 {vr(t3)}, {vr(t3)}, {vr(t1)}")
    for d4 in range(4):
        e(f"v_lshrrev_b32 {vr(t0)}, 1, {vr(C)}")
        e(f"v_add_u32 {vr(t0)}, {2*d4}, {vr(t0)}")
        e(f"v_xor_b32 {vr(t0)}, {vr(t0)}, {vr(t2)}")
        e(f"v_lshlrev_b32 {vr(t0)}, 4, {vr(t0)}")
        e(f"v_add_u32 {vr(VAB+d4)}, {vr(t0)}, {vr(t3)}")
    e(f"v_lshlrev_b32 {vr(t4)}, 3, {vr(G)}")
    e(f"v_add_u32 {vr(t4)}, {vr(t4)}, {vr(R)}")
    e(f"v_and_b32 {vr(t2)}, 2, {vr(R)}")
    e(f"v_and_b32 {vr(t0)}, 1, {vr(G)}")
    e(f"v_lshlrev_b32 {vr(t0)}, 2, {vr(t0)}")
    e(f"v_or_b32 {vr(t2)}, {vr(t2)}, {vr(t0)}")
    e(f"v_mul_u32_u24 {vr(t3)}, 384, {vr(t4)}")
    e(f"v_add_u32 {vr(t3)}, {vr(t3)}, {vr(t1)}")
    for d4 in range(4):
        e(f"v_lshrrev_b32 {vr(t0)}, 1, {vr(C)}")
        e(f"v_add_u32 {vr(t0)}, {2*d4}, {vr(t0)}")
        e(f"v_xor_b32 {vr(t0)}, {vr(t0)}, {vr(t2)}")
        e(f"v_lshlrev_b32 {vr(t0)}, 4, {vr(t0)}")
        e(f"v_add3_u32 {vr(WAB+d4)}, {vr(t0)}, {vr(t3)}, 0")
    e(f"v_and_b32 {vr(t2)}, 6, {vr(L15)}")
    e(f"v_lshlrev_b32 {vr(t1)}, 7, {vr(L15)}")
    e(f"s_mul_i32 s4, {sr(s_w)}, {48*128}")
    for sx in range(2):
        e(f"v_add_u32 {vr(t0)}, {4*sx}, {vr(G)}")
        e(f"v_xor_b32 {vr(t0)}, {vr(t0)}, {vr(t2)}")
        e(f"v_lshlrev_b32 {vr(t0)}, 4, {vr(t0)}")
        e(f"v_add3_u32 {vr(XAB+sx)}, {vr(t0)}, {vr(t1)}, s4")
    e(f"s_mul_i32 s3, {sr(s_w)}, 48")
    e(f"s_mul_i32 s4, {sr(s_h)}, 12288")
    for qt in range(3):
        e(f"v_add3_u32 {vr(t0)}, {vr(L15)}, s3, {16*qt}")
        e(f"v_lshrrev_b32 {vr(t1)}, 5, {vr(t0)}")
        e(f"v_mul_u32_u24 {vr(t1)}, 0x60000, {vr(t1)}")
        e(f"v_and_b32 {vr(t0)}, 31, {vr(t0)}")
        e(f"v_and_b32 {vr(t2)}, 1, {vr(G)}")
        e(f"v_lshl_add_u32 {vr(t0)}, {vr(t2)}, 5, {vr(t0)}")
        e(f"v_lshlrev_b32 {vr(t0)}, 4, {vr(t0)}")
        e(f"v_lshrrev_b32 {vr(t2)}, 1, {vr(G)}")
        e(f"v_lshlrev_b32 {vr(t2)}, 10, {vr(t2)}")
        e(f"v_add3_u32 {vr(t0)}, {vr(t0)}, {vr(t1)}, {vr(t2)}")
        e(f"v_add_u32 {vr(VOUT+qt)}, s4, {vr(t0)}")

    s_mb = 79

    def dma(srd, vo_list, soff_s, unit_add):
        ins = []
        for i in range(3):
            ins.append(f"s_add_u32 m0, {sr(s_mb)}, {unit_add + 1024*i}")
            ins.append("s_nop 0")
            if "nodma" not in EXP:
                ins.append(f"buffer_load_dwordx4 {vr(vo_list[i])}, {sr(srd,4)}, {sr(soff_s)} offen{' nt' if 'kvnt' in EXP else ''} lds")
        return ins

    def adv_iss():
        return [f"s_add_u32 {sr(s_mb)}, {sr(s_mb)}, 24576",
                f"s_cmp_ge_u32 {sr(s_mb)}, 147456",
                f"s_cselect_b32 {sr(s_mb)}, {sr(s_wlds)}, {sr(s_mb)}"]

    kvo = [VOKV, VOKV + 1, VOKV + 2]

    def issue_xw():
        ins = dma(sX, [VOX, VOX + 1, VOX + 2], s_xoff, 0) + dma(sW, [VOW, VOW + 1, VOW + 2], s_woff, 12288)
        ins += [f"s_add_u32 {sr(s_xoff)}, {sr(s_xoff)}, 64", f"s_add_u32 {sr(s_woff)}, {sr(s_woff)}, {32*12288}"]
        return ins + adv_iss()

    def issue_kk():
        ins = dma(sK, kvo, s_koff, 0) + [f"s_add_u32 {sr(s_koff)}, {sr(s_koff)}, 12288"]
        ins += dma(sK, kvo, s_koff, 12288) + [f"s_add_u32 {sr(s_koff)}, {sr(s_koff)}, 12288"]
        return ins + adv_iss()

    def issue_vk():
        ins = dma(sV, kvo, s_voff, 0) + dma(sK, kvo, s_koff, 12288)
        ins += [f"s_add_u32 {sr(s_voff)}, {sr(s_voff)}, 12288", f"s_add_u32 {sr(s_koff)}, {sr(s_koff)}, 12288"]
        return ins + adv_iss()

    def adv_cur():
        e(f"s_add_u32 {sr(s_cur)}, {sr(s_cur)}, 24576")
        e(f"s_cmp_eq_u32 {sr(s_cur)}, 147456")
        e(f"s_cselect_b32 {sr(s_cur)}, 0, {sr(s_cur)}")

    for s in (s_xoff, s_woff, s_koff, s_voff, s_cur, s_iss, s_n, s_flag):
        e(f"s_mov_b32 {sr(s)}, 0")
    e(f"s_mov_b32 {sr(s_mb)}, {sr(s_wlds)}")
    e(f"s_mov_b32 {sr(s_c)}, 0x{f32bits(c2):08x}")
    e(f"s_mov_b32 {sr(s_thr)}, 0x{f32bits(1024.0):08x}")
    s_head = 87
    s_nxt = 77
    LA = 4
    e(f"s_mov_b32 {sr(s_head)}, 0")

    def calc_nxt():
        e(f"s_add_u32 {sr(s_nxt)}, {sr(s_cur)}, 24576")
        e(f"s_cmp_eq_u32 {sr(s_nxt)}, 147456")
        e(f"s_cselect_b32 {sr(s_nxt)}, 0, {sr(s_nxt)}")

    e(f"s_mul_i32 s78, {sr(s_w)}, 6144")

    def issue_q(half):
        hb = half * 73728
        ins = []
        for i in range(6):
            ins.append(f"s_add_u32 m0, s78, {hb + 1024*i}")
            ins.append(f"s_add_u32 {sr(s_t1)}, {sr(s_xoff)}, {i*8*1280}")
            ins.append(f"buffer_load_dwordx4 {vr(VOX)}, {sr(sX,4)}, {sr(s_t1)} offen lds")
        for h in range(2):
            for sx in range(2):
                ins.append(f"s_add_u32 {sr(s_t1)}, {sr(s_woff)}, {h*384 + sx*32*12288}")
                for i in range(3):
                    ins.append(f"s_add_u32 m0, {sr(s_wlds)}, {hb + 24576 + (h*2+sx)*12288 + 1024*i}")
                    ins.append("s_nop 0")
                    ins.append(f"buffer_load_dwordx4 {vr(VOW+i)}, {sr(sW,4)}, {sr(s_t1)} offen lds")
        ins += [f"s_add_u32 {sr(s_xoff)}, {sr(s_xoff)}, 128", f"s_add_u32 {sr(s_woff)}, {sr(s_woff)}, {64*12288}"]
        return ins

    for ins in issue_q(0) + issue_q(1):
        e(ins)
    for i in range(256):
        e(f"v_accvgpr_write_b32 {ar(i)}, 0")
    A2V = 72
    for i in range(32):
        e(f"v_mov_b32 {vr(A2V+i)}, 0")
    XF = 104

    def accreg(h, a):
        if h == 0:
            return ar(a, 4)
        return ar(144 + a, 4) if a < 112 else vr(A2V + a - 112, 4)

    def q_body(half, issue, wait):
        hb = half * 73728
        e(f"s_waitcnt vmcnt({wait})")
        e("s_barrier")
        for sx in range(2):
            for qt in range(3):
                e(f"ds_read_b128 {vr(XF+(sx*3+qt)*4,4)}, {vr(XAB+sx)} offset:{hb + 2048*qt}" if hb + 2048 * qt < 65536 else
                  f"ds_read_b128 {vr(XF+(sx*3+qt)*4,4)}, {vr(KAC+sx)} offset:{2048*qt}")
        groups = []
        for sx in range(2):
            for h in range(2):
                ub = 24576 + (h * 2 + sx) * 12288
                for dt in range(12):
                    imm = ub + 128 * (dt >> 2)
                    reads = [(0, 2, "ds_read_b64_tr_b16 {dst}, " + f"{vr(VAC+(dt&3))} offset:{imm}"),
                             (2, 2, "ds_read_b64_tr_b16 {dst}, " + f"{vr(VAC+(dt&3))} offset:{imm+1536}")]
                    mf = []
                    for qt in range(3):
                        a = accreg(h, (dt * 3 + qt) * 4)
                        mf.append(lambda b, a=a, x=XF + (sx * 3 + qt) * 4: f"v_mfma_f32_16x16x32_bf16 {a}, {vr(b,4)}, {vr(x,4)}, {a}")
                    groups.append((reads, mf))
        ms = mfma_stream(groups, BUFS, LA)
        merge(e, ms, issue, 0, QSPAN)

    def set_half(half):
        hb = half * 73728
        for i in range(4):
            e(f"v_add_u32 {vr(VAC+i)}, {hb}, {vr(WAB+i)}")
        for sx in range(2):
            e(f"v_add_u32 {vr(KAC+sx)}, {hb}, {vr(XAB+sx)}")

    stamp()
    set_half(0)
    q_body(0, [], 18)
    e(f"s_mov_b32 {sr(s_n)}, 0")
    e.label("L_k1_q1")
    set_half(1)
    q_body(1, issue_q(0), 0)
    set_half(0)
    q_body(0, issue_q(1), 0)
    e(f"s_add_u32 {sr(s_n)}, {sr(s_n)}, 1")
    e(f"s_cmp_lt_u32 {sr(s_n)}, 4")
    e("s_cbranch_scc1 L_k1_q1")
    set_half(1)
    q_body(1, issue_kk() + issue_vk() + issue_vk(), 0)

    stamp()
    e("s_nop 7")

    def conv_q(h):
        for Gd in range(6):
            for qt in range(3):
                qa = QF + (Gd * 3 + qt) * 4
                for half in range(2):
                    a = ((2 * Gd + half) * 3 + qt) * 4
                    for r in range(4):
                        if h == 1 and a >= 112:
                            e(f"v_mul_f32 {vr(T+4*half+r)}, {sr(s_c)}, {vr(A2V+a-112+r)}")
                        else:
                            e(f"v_accvgpr_read_b32 {vr(T+4*half+r)}, {ar((144 if h else 0)+a+r)}")
                for half in range(2):
                    a = ((2 * Gd + half) * 3 + qt) * 4
                    if not (h == 1 and a >= 112):
                        for r in range(4):
                            e(f"v_mul_f32 {vr(T+4*half+r)}, {sr(s_c)}, {vr(T+4*half+r)}")
                e(f"v_cvt_pk_bf16_f32 {vr(qa)}, {vr(T)}, {vr(T+1)}")
                e(f"v_cvt_pk_bf16_f32 {vr(qa+1)}, {vr(T+2)}, {vr(T+3)}")
                e(f"v_cvt_pk_bf16_f32 {vr(qa+2)}, {vr(T+4)}, {vr(T+5)}")
                e(f"v_cvt_pk_bf16_f32 {vr(qa+3)}, {vr(T+6)}, {vr(T+7)}")
                e("s_nop 1")
                e(f"v_permlane32_swap_b32 {vr(qa)}, {vr(qa+2)}")
                e(f"v_permlane32_swap_b32 {vr(qa+1)}, {vr(qa+3)}")
                e("s_nop 1")
                e(f"v_permlane16_swap_b32 {vr(qa)}, {vr(qa+2)}")
                e(f"v_permlane16_swap_b32 {vr(qa+1)}, {vr(qa+3)}")
    conv_q(1)
    for i in range(72):
        e(f"v_accvgpr_write_b32 {ar(144+i)}, {vr(QF+i)}")
    conv_q(0)
    e(f"s_mov_b32 {sr(s_cur)}, 0")
    e.label("L_k1_head")
    for i in range(144):
        e(f"v_accvgpr_write_b32 {ar(i)}, 0")
    for qt in range(3):
        for i in range(4):
            e(f"v_mov_b32 {vr(NEGM+4*qt+i)}, 0")
        e(f"v_mov_b32 {vr(LS+qt)}, 0")
        e(f"v_mov_b32 {vr(AL+qt)}, 1.0")
    s_floor = 86
    e(f"s_mov_b32 {sr(s_floor)}, 0xff800000")

    def qk_groups(sbuf, kaddr, koff):
        groups = []
        for kt in range(2):
            for t in range(6):
                imm = 128 * (t >> 1) + 6144 * kt + koff
                reads = [(0, 4, "ds_read_b128 {dst}, " + f"{vr(kaddr+(t&1))} offset:{imm}")]
                mf = []
                for qt in range(3):
                    d = SB + 24 * sbuf + (kt * 3 + qt) * 4
                    c = vr(NEGM + 4 * qt, 4) if t == 0 else vr(d, 4)
                    mf.append(lambda b, d=d, c=c, t=t, qt=qt:
                              f"v_mfma_f32_16x16x32_bf16 {vr(d,4)}, {vr(b,4)}, {vr(QF+(t*3+qt)*4,4)}, {c}")
                groups.append((reads, mf))
        return groups

    def pv_groups(pbuf):
        groups = []
        for dt in range(12):
            imm = 128 * (dt >> 2)
            reads = [(0, 2, "ds_read_b64_tr_b16 {dst}, " + f"{vr(VAC+(dt&3))} offset:{imm}"),
                     (2, 2, "ds_read_b64_tr_b16 {dst}, " + f"{vr(VAC+(dt&3))} offset:{imm+6144}")]
            mf = []
            for qt in range(3):
                a = (dt * 3 + qt) * 4
                p = PB + 12 * pbuf + 4 * qt
                mf.append(lambda b, a=a, p=p: f"v_mfma_f32_16x16x32_bf16 {ar(a,4)}, {vr(b,4)}, {vr(p,4)}, {ar(a,4)}")
            groups.append((reads, mf))
        return groups

    slow_blocks = []

    def sm_list(buf, force=False):
        if "nocomp" in EXP:
            return [], []
        lab = e.newlabel("k1_sm")
        SUM = T

        def sreg(qt, i):
            return SB + 24 * buf + ((i >> 2) * 3 + qt) * 4 + (i & 3)

        def ereg(qt, i):
            return EB + qt * 8 + i

        def exps_sums():
            r = []
            for qt in range(3):
                for i in range(8):
                    r.append(f"v_exp_f32 {vr(ereg(qt,i))}, {vr(sreg(qt,i))}")
            for qt in range(3):
                r.append(f"v_add_f32 {vr(SUM+qt)}, {vr(ereg(qt,0))}, {vr(ereg(qt,1))}")
            for i in range(2, 8):
                for qt in range(3):
                    r.append(f"v_add_f32 {vr(SUM+qt)}, {vr(SUM+qt)}, {vr(ereg(qt,i))}")
            return r
        sb = []
        MX, tt = T + 3, T + 6
        for qt in range(3):
            sb.append(f"v_max3_f32 {vr(MX+qt)}, {vr(sreg(qt,0))}, {vr(sreg(qt,1))}, {vr(sreg(qt,2))}")
            sb.append(f"v_max3_f32 {vr(MX+qt)}, {vr(MX+qt)}, {vr(sreg(qt,3))}, {vr(sreg(qt,4))}")
            sb.append(f"v_max3_f32 {vr(MX+qt)}, {vr(MX+qt)}, {vr(sreg(qt,5))}, {vr(sreg(qt,6))}")
            sb.append(f"v_max_f32 {vr(MX+qt)}, {vr(MX+qt)}, {vr(sreg(qt,7))}")
            sb.append(f"v_mov_b32 {vr(tt)}, {vr(MX+qt)}")
            sb.append("s_nop 1")
            sb.append(f"v_permlane32_swap_b32 {vr(MX+qt)}, {vr(tt)}")
            sb.append(f"v_max_f32 {vr(MX+qt)}, {vr(MX+qt)}, {vr(tt)}")
            sb.append(f"v_mov_b32 {vr(tt)}, {vr(MX+qt)}")
            sb.append("s_nop 1")
            sb.append(f"v_permlane16_swap_b32 {vr(MX+qt)}, {vr(tt)}")
            sb.append(f"v_max_f32 {vr(MX+qt)}, {vr(MX+qt)}, {vr(tt)}")
            sb.append(f"v_max_f32 {vr(MX+qt)}, {sr(s_floor)}, {vr(MX+qt)}")
            sb.append(f"v_sub_f32 {vr(tt)}, 0, {vr(MX+qt)}")
            sb.append(f"v_exp_f32 {vr(AL+qt)}, {vr(tt)}")
            for i in range(4):
                sb.append(f"v_sub_f32 {vr(NEGM+4*qt+i)}, {vr(NEGM+4*qt+i)}, {vr(MX+qt)}")
            for i in range(8):
                sb.append(f"v_sub_f32 {vr(sreg(qt,i))}, {vr(sreg(qt,i))}, {vr(MX+qt)}")
            sb.append(f"v_mul_f32 {vr(LS+qt)}, {vr(LS+qt)}, {vr(AL+qt)}")
        sb += exps_sums()
        sb.append(f"s_mov_b32 {sr(s_flag)}, 1")
        sb.append(f"s_mov_b32 {sr(s_floor)}, 0")
        if force:
            p1 = sb
        else:
            p1 = exps_sums()
            for qt in range(3):
                p1.append(f"v_cmp_gt_f32 {sr(sF+2*qt,2)}, {vr(SUM+qt)}, {sr(s_thr)}")
            p1.append(f"s_or_b64 {sr(sF,2)}, {sr(sF,2)}, {sr(sF+2,2)}")
            p1.append(f"s_or_b64 {sr(sF,2)}, {sr(sF,2)}, {sr(sF+4,2)}")
            p1.append(f"s_cbranch_scc1 {lab}_slow")
            p1.append(f"{lab}_ret:")
            slow_blocks.append([f"{lab}_slow:"] + sb + [f"s_branch {lab}_ret"])
        p2 = []
        for qt in range(3):
            p2.append(f"v_add_f32 {vr(LS+qt)}, {vr(LS+qt)}, {vr(SUM+qt)}")
        for qt in range(3):
            for i in range(4):
                p2.append(f"v_cvt_pk_bf16_f32 {vr(PB+12*buf+4*qt+i)}, {vr(ereg(qt,2*i))}, {vr(ereg(qt,2*i+1))}")
        return p1, p2

    def split_ms(ms, nm):
        cnt = 0
        for idx, (k, t) in enumerate(ms):
            if k == 'm':
                cnt += 1
                if cnt == nm:
                    return ms[:idx + 1], ms[idx + 1:]
        return ms, []

    def rescale_check():
        lab = e.newlabel("k1_rs")
        e(f"s_cmp_eq_u32 {sr(s_flag)}, 0")
        e(f"s_cbranch_scc1 {lab}_skip")
        e("s_nop 7")
        for base in range(0, 144, 8):
            for i in range(8):
                e(f"v_accvgpr_read_b32 {vr(T+i)}, {ar(base+i)}")
            for i in range(8):
                qt = ((base + i) // 4) % 3
                e(f"v_mul_f32 {vr(T+i)}, {vr(T+i)}, {vr(AL+qt)}")
            for i in range(8):
                e(f"v_accvgpr_write_b32 {ar(base+i)}, {vr(T+i)}")
        e(f"s_mov_b32 {sr(s_flag)}, 0")
        e("s_nop 1")
        e.label(f"{lab}_skip")

    def v_addr(sbase):
        return [f"v_add_u32 {vr(VAC+i)}, {sr(sbase)}, {vr(VAB+i)}" for i in range(4)]

    e(f"s_cmp_eq_u32 {sr(s_head)}, 0")
    e("s_cbranch_scc0 L_k1_ap1")
    e("s_waitcnt vmcnt(6)")
    e("s_barrier")
    for x in issue_vk() + issue_vk():
        e(x)
    e("s_branch L_k1_ap2")
    e.label("L_k1_ap1")
    e("s_waitcnt vmcnt(18)")
    e("s_barrier")
    e.label("L_k1_ap2")
    calc_nxt()
    for i in range(2):
        e(f"v_add_u32 {vr(KAC+i)}, {sr(s_cur)}, {vr(KAB+i)}")
    g0 = qk_groups(0, KAC, 0)
    g1 = qk_groups(1, KAC, 12288)
    ms = mfma_stream(g0 + g1, BUFS, LA, next_groups=pv_groups(0), addr_update=v_addr(s_nxt))
    m_a, m_b = split_ms(ms, 36)
    p1, p2 = sm_list(0, force=True)
    merge(e, m_a, issue_vk(), 0, 20)
    e("s_nop 7")
    for x in p1:
        e(x)
    e("s_nop 1")
    merge(e, m_b, p2)
    e(f"s_mov_b32 {sr(s_flag)}, 0")
    e(f"s_mov_b32 {sr(s_cur)}, {sr(s_nxt)}")

    def a_body(j_par, do_qk, do_sm, last=False, iss="vk", pre=None):
        e("s_waitcnt vmcnt(18)")
        e("s_barrier")
        calc_nxt()
        if pre:
            for x in pre:
                e(x)
        if do_qk:
            e(f"s_add_u32 {sr(s_t0)}, {sr(s_cur)}, 12288")
            for i in range(2):
                e(f"v_add_u32 {vr(KAC+i)}, {sr(s_t0)}, {vr(KAB+i)}")
        groups = pv_groups(j_par)
        if do_qk:
            groups += qk_groups(j_par, KAC, 0)
        ms = mfma_stream(groups, BUFS, LA, primed=True,
                         next_groups=None if last else pv_groups(1 - j_par),
                         addr_update=None if last else v_addr(s_nxt))
        side = issue_vk() if iss == "vk" else issue_kk()
        if do_sm:
            p1, p2 = sm_list(1 - j_par)
            if do_qk:
                m_a, m_b = split_ms(ms, 36)
                if "early" in EXP:
                    merge(e, m_a, side + p1, 0, 34)
                    merge(e, m_b, p2)
                else:
                    merge(e, m_a, p1, 0, 34)
                    merge(e, m_b, side + p2)
            else:
                merge(e, ms, p1 + side + p2)
        else:
            merge(e, ms, side)
        if do_sm:
            if not do_qk:
                e("s_nop 7")
            rescale_check()
        e(f"s_mov_b32 {sr(s_cur)}, {sr(s_nxt)}")

    switch = [f"s_mov_b32 {sr(s_koff)}, 0", f"s_mov_b32 {sr(s_voff)}, 0",
              f"s_add_u32 {sr(sK)}, {sr(sK)}, 196608", f"s_addc_u32 {sr(sK+1)}, {sr(sK+1)}, 0",
              f"s_add_u32 {sr(sV)}, {sr(sV)}, 196608", f"s_addc_u32 {sr(sV+1)}, {sr(sV+1)}, 0",
              f"s_cmp_eq_u32 {sr(s_head)}, 0",
              f"s_cselect_b32 {sr(sK+2)}, {sr(sK+2)}, 0",
              f"s_cselect_b32 {sr(sV+2)}, {sr(sV+2)}, 0"]

    stamp()
    e(f"s_mov_b32 {sr(s_n)}, 0")
    e.label("L_k1_aloop")
    a_body(0, True, True)
    a_body(1, True, True)
    e(f"s_add_u32 {sr(s_n)}, {sr(s_n)}, 1")
    e(f"s_cmp_lt_u32 {sr(s_n)}, 5")
    e("s_cbranch_scc1 L_k1_aloop")
    a_body(0, True, True)
    a_body(1, True, True, iss="kk", pre=switch)
    a_body(0, True, True)
    a_body(1, True, True)
    a_body(0, False, True)
    a_body(1, False, False, last=True)

    stamp()
    tt = T + 8
    for qt in range(3):
        e(f"v_mov_b32 {vr(tt)}, {vr(LS+qt)}")
        e("s_nop 1")
        e(f"v_permlane32_swap_b32 {vr(LS+qt)}, {vr(tt)}")
        e(f"v_add_f32 {vr(LS+qt)}, {vr(LS+qt)}, {vr(tt)}")
        e(f"v_mov_b32 {vr(tt)}, {vr(LS+qt)}")
        e("s_nop 1")
        e(f"v_permlane16_swap_b32 {vr(LS+qt)}, {vr(tt)}")
        e(f"v_add_f32 {vr(LS+qt)}, {vr(LS+qt)}, {vr(tt)}")
        e(f"v_rcp_f32 {vr(LS+qt)}, {vr(LS+qt)}")
    e("s_nop 7")
    for qt in range(3):
        for Gd in range(6):
            qa = QF + (Gd * 3 + qt) * 4
            for half in range(2):
                a = ((2 * Gd + half) * 3 + qt) * 4
                for r in range(4):
                    e(f"v_accvgpr_read_b32 {vr(T+4*half+r)}, {ar(a+r)}")
            for i in range(8):
                e(f"v_mul_f32 {vr(T+i)}, {vr(T+i)}, {vr(LS+qt)}")
            for i in range(4):
                e(f"v_cvt_pk_bf16_f32 {vr(qa+i)}, {vr(T+2*i)}, {vr(T+2*i+1)}")
            e(f"s_movk_i32 s3, {Gd*2048}")
            e(f"buffer_store_dwordx4 {vr(qa,4)}, {vr(VOUT+qt)}, {sr(sO,4)}, s3 offen{ST1}")
    for qt in range(3):
        e(f"v_add_u32 {vr(VOUT+qt)}, 12288, {vr(VOUT+qt)}")
    e("s_nop 1")
    for i in range(72):
        e(f"v_accvgpr_read_b32 {vr(QF+i)}, {ar(144+i)}")
    e(f"s_add_u32 {sr(s_head)}, {sr(s_head)}, 1")
    e(f"s_cmp_lt_u32 {sr(s_head)}, 2")
    e("s_cbranch_scc1 L_k1_head")
    e("s_waitcnt vmcnt(0)")
    stamp()
    if "stamp" in EXP:
        e("s_add_u32 s40, s36, 0xC800000")
        e("s_addc_u32 s41, s37, 0")
        e("s_mov_b32 s42, 0x100000")
        e("s_mov_b32 s43, 0x00020000")
        e("s_lshl_b32 s3, s2, 2")
        e(f"s_add_u32 s3, s3, {sr(s_w)}")
        e("s_lshl_b32 s3, s3, 6")
        e("v_mov_b32 v1, s3")
        for i in range(6):
            e(f"v_mov_b32 v2, s{88+2*i}")
            e(f"buffer_store_dword v2, v1, s[40:43], 0 offen offset:{4*i}")
        e("s_waitcnt vmcnt(0)")
    e.label("L_k1_end")
    e("s_endpgm")
    for sb in slow_blocks:
        for s in sb:
            if s.endswith(":"):
                e.label(s[:-1])
            else:
                e(s)


def gen_k2(e):
    ACC = 0
    FS = 8
    VOW = 56
    VOA = 57
    AB = 58
    BBs = 60
    AC = 61
    BC = 63
    VOP = 64
    T = 65
    sWO, sA, sP = 40, 44, 48
    s_blk, s_ks, s_rb, s_nc, s_w, s_wr, s_wc, s_mb, s_wooff, s_aoff, s_cur, s_nxt, s_n = range(60, 73)
    RING = 6
    STG = 24576
    NST = 48

    e.raw(".globl k2_kernel")
    e.raw(".p2align 8")
    e.raw(".type k2_kernel,@function")
    e.label("k2_kernel")
    e("s_cmp_ge_u32 s2, 240")
    e("s_cbranch_scc1 L_k2_end")
    e("s_load_dwordx2 s[16:17], s[0:1], 32")
    e("s_load_dwordx2 s[18:19], s[0:1], 72")
    e("s_load_dwordx2 s[36:37], s[0:1], 96")
    e("s_and_b32 s3, s2, 7")
    e(f"s_lshr_b32 {sr(s_blk)}, s3, 2")
    e(f"s_and_b32 {sr(s_ks)}, s3, 3")
    e("s_lshr_b32 s4, s2, 3")
    e("s_mul_i32 s5, s4, 52")
    e(f"s_lshr_b32 {sr(s_rb)}, s5, 8")
    e(f"s_mul_i32 s5, {sr(s_rb)}, 5")
    e(f"s_sub_u32 {sr(s_nc)}, s4, s5")
    e(f"v_lshrrev_b32 {vr(T)}, 6, v0")
    e("s_nop 0")
    e(f"v_readfirstlane_b32 {sr(s_w)}, {vr(T)}")
    e("s_waitcnt lgkmcnt(0)")
    e(f"s_lshr_b32 {sr(s_wr)}, {sr(s_w)}, 1")
    e(f"s_and_b32 {sr(s_wc)}, {sr(s_w)}, 1")
    e(f"s_cmp_eq_u32 {sr(s_blk)}, 0")
    e("s_cselect_b32 s4, s16, s18")
    e("s_cselect_b32 s5, s17, s19")
    e(f"s_mul_i32 s3, {sr(s_ks)}, {1536*1280}")
    e(f"s_lshl_b32 s6, {sr(s_nc)}, 8")
    e("s_add_u32 s3, s3, s6")
    e(f"s_add_u32 {sr(sWO)}, s4, s3")
    e(f"s_addc_u32 {sr(sWO+1)}, s5, 0")
    e(f"s_sub_u32 {sr(sWO+2)}, 7864320, s3")
    e(f"s_mov_b32 {sr(sWO+3)}, 0x00020000")
    e(f"s_mul_i32 s3, {sr(s_blk)}, 48")
    e(f"s_lshl_b32 s6, {sr(s_rb)}, 3")
    e("s_add_u32 s3, s3, s6")
    e("s_mul_i32 s3, s3, 393216")
    e(f"s_mul_i32 s6, {sr(s_ks)}, {96*1024}")
    e("s_add_u32 s3, s3, s6")
    e(f"s_add_u32 {sr(sA)}, s36, s3")
    e(f"s_addc_u32 {sr(sA+1)}, s37, 0")
    e(f"s_sub_u32 {sr(sA+2)}, {8*393216}, s6")
    e(f"s_mov_b32 {sr(sA+3)}, 0x00020000")
    e(f"s_mul_i32 s3, {sr(s_ks)}, 60")
    e(f"s_mul_i32 s6, {sr(s_blk)}, 30")
    e("s_add_u32 s3, s3, s6")
    e(f"s_mul_i32 s6, {sr(s_rb)}, 5")
    e("s_add_u32 s3, s3, s6")
    e(f"s_add_u32 s3, s3, {sr(s_nc)}")
    e("s_lshl_b32 s3, s3, 17")
    e(f"s_add_u32 s3, s3, {WS_P_OFF}")
    e(f"s_add_u32 {sr(sP)}, s36, s3")
    e(f"s_addc_u32 {sr(sP+1)}, s37, 0")
    e(f"s_mov_b32 {sr(sP+2)}, 131072")
    e(f"s_mov_b32 {sr(sP+3)}, 0x00020000")

    LANE, HH, GP, R, C = 1, 2, 3, 4, 5
    t0, t1, t2, t3 = T, T + 1, T + 2, T + 3
    e(f"v_and_b32 {vr(LANE)}, 63, v0")
    e(f"v_lshrrev_b32 {vr(HH)}, 5, {vr(LANE)}")
    e(f"v_bfe_u32 {vr(GP)}, {vr(LANE)}, 4, 1")
    e(f"v_bfe_u32 {vr(R)}, {vr(LANE)}, 2, 2")
    e(f"v_and_b32 {vr(C)}, 3, {vr(LANE)}")
    e(f"v_lshrrev_b32 {vr(t0)}, 4, {vr(LANE)}")
    e(f"v_and_b32 {vr(t1)}, 15, {vr(LANE)}")
    e(f"v_lshlrev_b32 {vr(t2)}, 2, {vr(t0)}")
    e(f"v_xor_b32 {vr(t1)}, {vr(t1)}, {vr(t2)}")
    e(f"v_lshlrev_b32 {vr(t1)}, 4, {vr(t1)}")
    e(f"v_mul_u32_u24 {vr(t0)}, 1280, {vr(t0)}")
    e(f"s_mul_i32 s3, {sr(s_w)}, {8*1280}")
    e(f"v_add3_u32 {vr(VOW)}, {vr(t0)}, {vr(t1)}, s3")
    e(f"s_mul_i32 s3, {sr(s_w)}, {2*393216}")
    e(f"v_lshlrev_b32 {vr(VOA)}, 4, {vr(LANE)}")
    e(f"v_add_u32 {vr(VOA)}, s3, {vr(VOA)}")
    e(f"v_lshlrev_b32 {vr(t0)}, 2, {vr(HH)}")
    e(f"v_add_u32 {vr(t0)}, {vr(t0)}, {vr(R)}")
    e(f"v_lshlrev_b32 {vr(t0)}, 8, {vr(t0)}")
    e(f"v_and_b32 {vr(t1)}, 1, {vr(C)}")
    e(f"v_lshlrev_b32 {vr(t1)}, 3, {vr(t1)}")
    e(f"v_add_u32 {vr(t0)}, {vr(t0)}, {vr(t1)}")
    e(f"v_lshlrev_b32 {vr(t2)}, 2, {vr(R)}")
    e(f"s_lshl_b32 s3, {sr(s_wc)}, 3")
    for nt in range(2):
        e(f"v_lshrrev_b32 {vr(t1)}, 1, {vr(C)}")
        e(f"v_lshl_add_u32 {vr(t1)}, {vr(GP)}, 1, {vr(t1)}")
        e(f"v_add3_u32 {vr(t1)}, {vr(t1)}, s3, {4*nt}")
        e(f"v_xor_b32 {vr(t1)}, {vr(t1)}, {vr(t2)}")
        e(f"v_lshlrev_b32 {vr(t1)}, 4, {vr(t1)}")
        e(f"v_add3_u32 {vr(AB+nt)}, {vr(t0)}, {vr(t1)}, 0")
        e(f"v_add_u32 {vr(AB+nt)}, 16384, {vr(AB+nt)}")
    e(f"s_lshl_b32 s3, {sr(s_wr)}, 13")
    e(f"v_lshlrev_b32 {vr(BBs)}, 4, {vr(LANE)}")
    e(f"v_add_u32 {vr(BBs)}, s3, {vr(BBs)}")
    e(f"s_lshl_b32 s3, {sr(s_w)}, 15")
    e(f"v_lshlrev_b32 {vr(VOP)}, 4, {vr(LANE)}")
    e(f"v_add_u32 {vr(VOP)}, s3, {vr(VOP)}")

    def issue():
        ins = []
        for i in range(4):
            ins.append(f"s_add_u32 m0, {sr(s_mb)}, {1024*i}")
            ins.append(f"s_add_u32 s3, {sr(s_aoff)}, {(i>>1)*393216 + (i&1)*1024}")
            ins.append(f"buffer_load_dwordx4 {vr(VOA)}, {sr(sA,4)}, s3 offen lds")
        for i in range(2):
            ins.append(f"s_add_u32 m0, s78, {1024*i}")
            ins.append(f"s_add_u32 s3, {sr(s_wooff)}, {i*4*1280}")
            ins.append(f"buffer_load_dwordx4 {vr(VOW)}, {sr(sWO,4)}, s3 offen lds")
        ins += [f"s_add_u32 {sr(s_aoff)}, {sr(s_aoff)}, 2048",
                f"s_add_u32 {sr(s_wooff)}, {sr(s_wooff)}, {32*1280}",
                f"s_add_u32 {sr(s_mb)}, {sr(s_mb)}, {STG}",
                f"s_cmp_ge_u32 {sr(s_mb)}, {RING*STG}",
                f"s_cselect_b32 {sr(s_mb)}, s76, {sr(s_mb)}",
                f"s_add_u32 s78, {sr(s_mb)}, s77"]
        return ins

    e(f"s_lshl_b32 s76, {sr(s_w)}, 12")
    e(f"s_lshl_b32 s77, {sr(s_w)}, 11")
    e("s_sub_u32 s77, 16384, s77")
    e(f"s_mov_b32 {sr(s_mb)}, s76")
    e(f"s_add_u32 s78, {sr(s_mb)}, s77")
    e(f"s_mov_b32 {sr(s_aoff)}, 0")
    e(f"s_mov_b32 {sr(s_wooff)}, 0")
    e(f"s_mov_b32 {sr(s_cur)}, 0")
    e(f"s_mov_b32 {sr(s_n)}, 0")
    for _ in range(RING - 1):
        for ins in issue():
            e(ins)
    for i in range(128):
        e(f"v_accvgpr_write_b32 {ar(ACC+i)}, 0")

    def reads(ks, fs):
        b = FS + 24 * fs
        r = []
        for nt in range(2):
            r.append(f"ds_read_b64_tr_b16 {vr(b+4*nt,2)}, {vr(AC+nt)} offset:{2048*ks}")
            r.append(f"ds_read_b64_tr_b16 {vr(b+4*nt+2,2)}, {vr(AC+nt)} offset:{2048*ks+4096}")
        for qt in range(4):
            r.append(f"ds_read_b128 {vr(b+8+4*qt,4)}, {vr(BC)} offset:{2048*qt+1024*ks}")
        return r

    def mfmas(fs):
        b = FS + 24 * fs
        m = []
        for qt in range(4):
            for nt in range(2):
                a = ACC + (qt * 2 + nt) * 16
                m.append(f"v_mfma_f32_32x32x16_bf16 {ar(a,16)}, {vr(b+4*nt,4)}, {vr(b+8+4*qt,4)}, {ar(a,16)}")
        return m

    def addr(sb):
        return [f"v_add_u32 {vr(AC)}, {sr(sb)}, {vr(AB)}", f"v_add_u32 {vr(AC+1)}, {sr(sb)}, {vr(AB+1)}",
                f"v_add_u32 {vr(BC)}, {sr(sb)}, {vr(BBs)}"]

    def inter(m, side):
        k = 0
        for i, x in enumerate(m):
            e(x)
            tgt = ((i + 1) * len(side) + len(m) - 1) // len(m)
            while k < tgt:
                e(side[k])
                k += 1

    def stage(first=False, last=False):
        e("s_waitcnt vmcnt(18)")
        e("s_barrier")
        e(f"s_add_u32 {sr(s_nxt)}, {sr(s_cur)}, {STG}")
        e(f"s_cmp_eq_u32 {sr(s_nxt)}, {RING*STG}")
        e(f"s_cselect_b32 {sr(s_nxt)}, 0, {sr(s_nxt)}")
        if first:
            for x in addr(s_cur) + reads(0, 0):
                e(x)
        e("s_waitcnt lgkmcnt(0)")
        iss = issue()
        h = len(iss) // 2
        inter(mfmas(0), reads(1, 1) + iss[:h])
        e("s_waitcnt lgkmcnt(0)")
        inter(mfmas(1), ([] if last else addr(s_nxt) + reads(0, 0)) + iss[h:])
        e(f"s_mov_b32 {sr(s_cur)}, {sr(s_nxt)}")

    stage(first=True)
    e.label("L_k2_loop")
    stage()
    e(f"s_add_u32 {sr(s_n)}, {sr(s_n)}, 1")
    e(f"s_cmp_lt_u32 {sr(s_n)}, {NST-2}")
    e("s_cbranch_scc1 L_k2_loop")
    stage(last=True)
    e("s_nop 15")
    for i in range(32):
        e(f"s_movk_i32 s3, {1024*i}")
        e(f"buffer_store_dwordx4 {ar(ACC+4*i,4)}, {vr(VOP)}, {sr(sP,4)}, s3 offen{ST2}")
    e("s_waitcnt vmcnt(0)")
    e.label("L_k2_end")
    e("s_endpgm")


def gen_k3(e):
    e.raw(".globl k3_kernel")
    e.raw(".p2align 8")
    e.raw(".type k3_kernel,@function")
    e.label("k3_kernel")
    e("s_cmp_ge_u32 s2, 1920")
    e("s_cbranch_scc1 L_k3_end")
    e("s_load_dwordx2 s[4:5], s[0:1], 80")
    e("s_load_dwordx2 s[6:7], s[0:1], 96")
    e("s_waitcnt lgkmcnt(0)")
    e("s_mov_b32 s8, s4")
    e("s_mov_b32 s9, s5")
    e("s_mov_b32 s10, 3932160")
    e("s_mov_b32 s11, 0x00020000")
    e(f"s_add_u32 s12, s6, {WS_P_OFF}")
    e("s_addc_u32 s13, s7, 0")
    e("s_mov_b32 s14, 31457280")
    e("s_mov_b32 s15, 0x00020000")
    e("s_lshl_b32 s16, s2, 12")
    e("v_lshlrev_b32 v2, 4, v0")
    e("v_add_u32 v2, s16, v2")
    for ks in range(4):
        e(f"s_mov_b32 s19, {ks*60*131072}")
        e(f"buffer_load_dwordx4 v[{8+4*ks}:{11+4*ks}], v2, s[12:15], s19 offen")
    e("s_lshr_b32 s17, s2, 5")
    e("s_cmp_ge_u32 s17, 30")
    e("s_cselect_b32 s18, 1, 0")
    e("s_mul_i32 s20, s18, 30")
    e("s_sub_u32 s17, s17, s20")
    e("s_mul_i32 s20, s17, 52")
    e("s_lshr_b32 s20, s20, 8")
    e("s_mul_i32 s21, s20, 5")
    e("s_sub_u32 s21, s17, s21")
    e("s_bfe_u32 s22, s2, 0x20003")
    e("s_and_b32 s23, s2, 7")
    e("s_lshr_b32 s24, s23, 1")
    e("s_and_b32 s25, s23, 1")
    e("s_lshr_b32 s26, s22, 1")
    e("s_and_b32 s27, s22, 1")
    e("s_lshl_b32 s28, s20, 8")
    e("s_lshl_b32 s29, s26, 7")
    e("s_add_u32 s28, s28, s29")
    e("s_lshl_b32 s29, s24, 5")
    e("s_add_u32 s28, s28, s29")
    e("s_mul_i32 s30, s18, 640")
    e("s_lshl_b32 s29, s21, 7")
    e("s_add_u32 s30, s30, s29")
    e("s_lshl_b32 s29, s27, 6")
    e("s_add_u32 s30, s30, s29")
    e("s_lshl_b32 s29, s25, 5")
    e("s_add_u32 s30, s30, s29")
    e("v_and_b32 v3, 31, v0")
    e("v_add_u32 v3, s28, v3")
    e("v_mul_u32_u24 v3, 2560, v3")
    e("v_lshrrev_b32 v4, 6, v0")
    e("v_lshlrev_b32 v4, 3, v4")
    e("v_bfe_u32 v5, v0, 5, 1")
    e("v_lshl_add_u32 v4, v5, 2, v4")
    e("v_add_u32 v4, s30, v4")
    e("v_lshl_add_u32 v3, v4, 1, v3")
    e("s_waitcnt vmcnt(0)")
    for i in range(4):
        e(f"v_add_f32 v{8+i}, v{8+i}, v{12+i}")
        e(f"v_add_f32 v{16+i}, v{16+i}, v{20+i}")
    for i in range(4):
        e(f"v_add_f32 v{8+i}, v{8+i}, v{16+i}")
    e("v_cvt_pk_bf16_f32 v24, v8, v9")
    e("v_cvt_pk_bf16_f32 v25, v10, v11")
    e("buffer_store_dwordx2 v[24:25], v3, s[8:11], 0 offen")
    e("s_waitcnt vmcnt(0)")
    e.label("L_k3_end")
    e("s_endpgm")


def desc2(name, nfv, acc, sgpr=96):
    return f""".amdhsa_kernel {name}
  .amdhsa_next_free_vgpr {nfv}
  .amdhsa_next_free_sgpr {sgpr}
  .amdhsa_accum_offset {acc}
  .amdhsa_group_segment_fixed_size 0
  .amdhsa_kernarg_size 104
  .amdhsa_user_sgpr_count 2
  .amdhsa_user_sgpr_kernarg_segment_ptr 1
  .amdhsa_system_sgpr_workgroup_id_x 1
.end_amdhsa_kernel
"""


def main():
    e = Emitter()
    out = HEADER
    out += "; @launch kernel=k1_kernel grid=(256,1,1) block=(256,1,1) lds=147456\n"
    out += "; @launch kernel=k2_kernel grid=(240,1,1) block=(256,1,1) lds=147456\n"
    out += "; @launch kernel=k3_kernel grid=(1920,1,1) block=(256,1,1) lds=0\n"
    out += '.amdgcn_target "amdgcn-amd-amdhsa--gfx950"\n.text\n'
    gen_k1(e)
    gen_k2(e)
    gen_k3(e)
    out += e.text()
    out += '.section .rodata,"a"\n.p2align 6\n'
    out += desc2("k1_kernel", 512, 256, 102)
    out += ".p2align 6\n" + desc2("k2_kernel", 72+128, 72)
    out += ".p2align 6\n" + desc("k3_kernel", 32)
    path = sys.argv[1] if len(sys.argv) > 1 else f"cdna_kernels/{NAME}.s"
    open(path, "w").write(out)


if __name__ == "__main__":
    main()
```
